```python
import torch

def _softmax(x, axis=-1):
    return torch.softmax(x, dim=axis)

def _gelu(x):
    return torch.nn.functional.gelu(x, approximate='tanh')

def _silu(x):
    return torch.nn.functional.silu(x)

def _sigmoid(x):
    return torch.sigmoid(x)

def _layernorm(x, axis=-1, eps=1e-05):
    m = x.mean(dim=axis, keepdim=True)
    v = x.var(dim=axis, keepdim=True, unbiased=False)
    return (x - m) / torch.sqrt(v + eps)

def _scatter_add(tgt, idx, src, axis=0):
    return tgt.clone().index_add_(axis, idx, src)

def _segment_sum(src, seg, n):
    out = torch.zeros((n,) + src.shape[1:], dtype=src.dtype)
    return out.index_add_(0, seg, src)

def _pad(x, pw):
    flat = tuple((v for pair in reversed(pw) for v in pair))
    return torch.nn.functional.pad(x, flat)
kernel_name = 'interleave_layers__spectral_gfnet__memory_aug_recurrent_mem_tr__prompt'

def setup_inputs():

    _w = lambda a: (lambda t: t.to(torch.bfloat16) if t.is_floating_point() else t)(torch.as_tensor(a))

    def _A_setup():
        B, S, D = (1, 2048, 640)
        Df = D // 2 + 1
        return {'x': _w((lambda *s: torch.randn(*s, dtype=torch.bfloat16) * 0.05)(B, S, D)), 'w_r': _w((lambda *s: torch.randn(*s, dtype=torch.bfloat16) * 0.4)(S, Df) * 0.02), 'w_i': _w((lambda *s: torch.randn(*s, dtype=torch.bfloat16) * 0.4)(S, Df) * 0.02)}
    _A_in = _A_setup()

    def _B_setup():
        B, S, Dm = (1, 2048, 640)
        H, Dh = (32, 128)
        M, seg = (8, 32)
        seg = min(seg, S)
        S = S // seg * seg
        return {'x': _w((lambda *s: torch.randn(*s, dtype=torch.bfloat16) * 0.05)(B, S, Dm)), 'mem0': _w((lambda *s: torch.randn(*s, dtype=torch.bfloat16) * 0.2)(B, M, Dm)), 'Wq': _w((lambda *s: torch.randn(*s, dtype=torch.bfloat16) * 1.6)(Dm, H, Dh) * Dm ** (-0.5)), 'Wk': _w((lambda *s: torch.randn(*s, dtype=torch.bfloat16) * 1.6)(Dm, H, Dh) * Dm ** (-0.5)), 'Wv': _w((lambda *s: torch.randn(*s, dtype=torch.bfloat16) * 0.2)(Dm, H, Dh) * Dm ** (-0.5)), 'Wo': _w((lambda *s: torch.randn(*s, dtype=torch.bfloat16) * 0.2)(H, Dh, Dm) * (H * Dh) ** (-0.5)), 'seg_len': seg}
    _B_in = _B_setup()
    return {'A_x': _A_in['x'], 'A_w_r': _A_in['w_r'], 'A_w_i': _A_in['w_i'], 'B_x': _B_in['x'], 'B_mem0': _B_in['mem0'], 'B_Wq': _B_in['Wq'], 'B_Wk': _B_in['Wk'], 'B_Wv': _B_in['Wv'], 'B_Wo': _B_in['Wo'], 'B_seg_len': _B_in['seg_len']}

def reference(A_x, A_w_r, A_w_i, B_x, B_mem0, B_Wq, B_Wk, B_Wv, B_Wo, B_seg_len):

    def _A_ref(x, w_r, w_i):
        B, S, D = x.shape
        X = (lambda x, axes=(-2, -1): torch.fft.rfft2(x.float(), dim=axes))(x, axes=(-2, -1))
        W = w_r + 1j * w_i
        X = X * W
        y = (lambda x, s, axes=(-2, -1): torch.fft.irfft2(x, s=s, dim=axes).to(torch.bfloat16))(X, (S, D), axes=(-2, -1))
        return y

    def _B_ref(x, mem0, Wq, Wk, Wv, Wo, seg_len):
        B, S, Dm = x.shape
        H, Dh = (Wq.shape[1], Wq.shape[2])
        M = mem0.shape[1]
        scale = Dh ** (-0.5)
        n_seg = S // seg_len
        L = M + seg_len
        idx = torch.arange(L)
        mask = (idx[:, None] < M) | (idx[:, None] >= idx[None, :])
        mem = mem0
        outs = []
        for s in range(n_seg):
            xs = x[:, s * seg_len:(s + 1) * seg_len, :].clone()
            h = torch.concatenate([mem, xs], axis=1)
            q = torch.einsum('btd,dhe->bhte', h, Wq)
            k = torch.einsum('btd,dhe->bhte', h, Wk)
            v = torch.einsum('btd,dhe->bhte', h, Wv)
            scores = torch.einsum('bhqe,bhke->bhqk', q, k) * scale
            scores = torch.where(mask[None, None], scores, -1000000000.0)
            p = _softmax(scores, axis=-1)
            o = torch.einsum('bhqk,bhke->bhqe', p, v)
            o = torch.einsum('bhte,hed->btd', o, Wo)
            mem = o[:, :M, :].clone()
            outs.append(o[:, M:, :])
        return torch.concatenate(outs, axis=1)
    x = A_x
    x = x + _A_ref(_layernorm(x, axis=-1), A_w_r, A_w_i)
    x = x + _B_ref(_layernorm(x, axis=-1), B_mem0, B_Wq, B_Wk, B_Wv, B_Wo, B_seg_len)
    x = x + _A_ref(_layernorm(x, axis=-1), A_w_r, A_w_i)
    x = x + _B_ref(_layernorm(x, axis=-1), B_mem0, B_Wq, B_Wk, B_Wv, B_Wo, B_seg_len)
    return x
```

```python
import re

class Reg:
    def __init__(self, cls, base, n=1):
        self.cls, self.base, self.n = cls, base, n
    def __getitem__(self, i):
        if isinstance(i, slice):
            a = i.start or 0; b = self.n if i.stop is None else i.stop
            assert 0 <= a < b <= self.n, (self, i)
            return Reg(self.cls, self.base + a, b - a)
        assert 0 <= i < self.n, (self, i)
        return Reg(self.cls, self.base + i, 1)
    def sub(self, a, n): return self[a:a + n]
    def __len__(self): return self.n
    def __str__(self):
        return f"{self.cls}{self.base}" if self.n == 1 else f"{self.cls}[{self.base}:{self.base + self.n - 1}]"
    __repr__ = __str__
    def __format__(self, spec): return str(self)

class Pool:
    def __init__(self, cls, lo, hi):
        self.cls, self.lo, self.hi = cls, lo, hi
        self.used = set(); self.high = lo
    def __call__(self, n=1, align=None):
        if align is None: align = 1 if n == 1 else (2 if self.cls != 's' or n == 2 else 4)
        b = (self.lo + align - 1) // align * align
        while b + n <= self.hi:
            if not any((b + i) in self.used for i in range(n)):
                self.used.update(range(b, b + n)); self.high = max(self.high, b + n)
                return Reg(self.cls, b, n)
            b += align
        raise RuntimeError(f"out of {self.cls} registers (want {n}, used {len(self.used)})")
    def at(self, base, n=1):
        assert not any((base + i) in self.used for i in range(n)), (self.cls, base, n)
        self.used.update(range(base, base + n)); self.high = max(self.high, base + n)
        return Reg(self.cls, base, n)
    def free(self, *regs):
        for r in regs:
            for i in range(r.n):
                self.used.remove(r.base + i)
    def nfree(self): return self.hi - self.lo - len(self.used)

_REG = re.compile(r'^(-|\|)?(?:abs\()?([vas])(?:(\d+)|\[(\d+):(\d+)\])\)?\|?$')
_SPECIAL = {'vcc': ['vcc_lo', 'vcc_hi'], 'vcc_lo': ['vcc_lo'], 'vcc_hi': ['vcc_hi'], 'exec': ['exec_lo', 'exec_hi'],
            'exec_lo': ['exec_lo'], 'exec_hi': ['exec_hi'], 'm0': ['m0']}
def regs_of(op):
    op = op.strip()
    if op in _SPECIAL: return list(_SPECIAL[op])
    m = _REG.match(op)
    if not m: return []
    c = m.group(2)
    if m.group(3) is not None: return [c + m.group(3)]
    return [c + str(i) for i in range(int(m.group(4)), int(m.group(5)) + 1)]

TRANS = ('v_exp_', 'v_log_', 'v_rcp_', 'v_rsq_', 'v_sqrt_', 'v_sin_', 'v_cos_')
def mfma_passes(mn):
    if '32x32x16' in mn or '32x32x8' in mn or ('smfmac' in mn and '32x32x32' in mn): return 8
    if '16x16x32' in mn or '16x16x16' in mn or '16x16x64' in mn: return 4
    raise ValueError(mn)

class Ins:
    def __init__(self, text, tok=None, need=None):
        self.text = text; self.tok = tok; self.need = need or []
        t = text.split(';')[0].strip()
        self.label = None; self.mn = None
        self.rd = set(); self.wr = set(); self.kind = 'other'; self.target = None
        if t.endswith(':'):
            self.label = t[:-1]; self.kind = 'label'; return
        if t == '' or t.startswith('.'):
            self.kind = 'pseudo'; return
        parts = t.split(None, 1); mn = self.mn = parts[0]
        rest = parts[1] if len(parts) > 1 else ''
        ops = [o.strip() for o in re.split(r',(?![^\[\(]*[\]\)])', rest)] if rest else []
        mods = ''
        if ops:
            sp = ops[-1].split(None, 1); ops[-1] = sp[0]; mods = sp[1] if len(sp) > 1 else ''
        self.ops, self.mods = ops, mods
        R = [regs_of(o) for o in ops]
        allr = lambda a: set(x for r in R[a:] for x in r)
        self.dpp = '_dpp' in mn or 'row_' in mods or 'quad_perm' in mods
        self.opsel = '_sdwa' in mn or ('op_sel' in mods and not mn.startswith('v_pk_'))
        if mn.startswith('v_mfma') or mn.startswith('v_smfmac'):
            self.kind = 'mfma'; self.passes = mfma_passes(mn)
            self.wr = set(R[0]); self.D = R[0]
            if mn.startswith('v_smfmac'):
                self.C = R[0]; self.AB = set(R[1] + R[2] + R[3])
            else:
                self.C = R[3]; self.AB = set(R[1] + R[2])
            self.rd = set(self.C) | self.AB | {'exec_lo', 'exec_hi'}
        elif mn.startswith('v_'):
            self.kind = 'valu'
            if mn == 'v_nop': pass
            elif 'swap' in mn:
                self.wr = allr(0); self.rd = allr(0)
            elif mn.startswith(('v_add_co', 'v_sub_co', 'v_addc_co', 'v_subb_co', 'v_subrev_co', 'v_mad_u64', 'v_div_scale')):
                self.wr = set(R[0] + R[1]); self.rd = allr(2)
            else:
                self.wr = set(R[0]); self.rd = allr(1)
                if mn.startswith(('v_fmac', 'v_dot2c', 'v_writelane', 'v_pk_fmac')) or self.dpp or self.opsel: self.rd |= self.wr
                if mn.startswith('v_cmpx'): self.wr |= {'exec_lo', 'exec_hi'}
            self.xrd = set(self.rd)
            self.rd |= {'exec_lo', 'exec_hi'}
            self.trans = mn.startswith(TRANS); self.dot = mn.startswith('v_dot')
        elif mn.startswith('ds_'):
            self.kind = 'ds'
            if mn.startswith(('ds_read', 'ds_bpermute', 'ds_permute', 'ds_swizzle')) or '_rtn' in mn:
                self.wr = set(R[0]); self.rd = allr(1)
                if 'd16' in mn: self.rd |= self.wr
            else: self.rd = allr(0)
        elif mn.startswith(('buffer_', 'global_')):
            self.kind = 'vmem'; self.wide = set()
            ml = mods.split()
            if mn in ('buffer_inv', 'buffer_wbl2'): pass
            elif 'lds' in ml or '_lds_' in mn:
                self.rd = allr(0) | {'m0'}; self.dma = True
            elif '_load' in mn:
                self.wr = set(R[0]); self.rd = allr(1)
                if 'd16' in mn: self.rd |= self.wr
            elif '_atomic' in mn:
                self.rd = allr(0)
                if 'sc0' in ml:
                    self.wr = set(R[0])
                    if mn.startswith('global_'): self.rd = allr(1)
            else:
                self.rd = allr(0)
                if 'x3' in mn or 'x4' in mn: self.wide = set(R[0] if mn.startswith('buffer_') else R[1])
        elif mn.startswith(('s_load', 's_memtime', 's_memrealtime', 's_buffer_load', 's_atomic')):
            self.kind = 'smem'; self.wr = set(R[0]); self.rd = allr(1)
        elif mn == 's_waitcnt':
            self.kind = 'wait'
            m = re.search(r'vmcnt\((\d+)\)', rest); self.vm = int(m.group(1)) if m else None
            m = re.search(r'lgkmcnt\((\d+)\)', rest); self.lg = int(m.group(1)) if m else None
        elif mn == 's_nop':
            self.kind = 'nop'; self.n = int(ops[0], 0) + 1
        elif mn in ('s_branch',) or mn.startswith('s_cbranch'):
            self.kind = 'branch'; self.target = ops[0]
            if 'vcc' in mn: self.rd = {'vcc_lo', 'vcc_hi'}
            if 'exec' in mn: self.rd = {'exec_lo', 'exec_hi'}
        elif mn == 's_endpgm': self.kind = 'end'
        elif mn in ('s_barrier', 's_sleep', 's_setprio', 's_setreg_b32', 's_setreg_imm32_b32'):
            self.kind = 'salu'; self.rd = allr(0)
        elif mn.startswith('s_'):
            self.kind = 'salu'
            if mn.startswith(('s_cmp', 's_bitcmp')): self.rd = allr(0)
            else:
                self.wr = set(R[0]); self.rd = allr(1)
                if mn.startswith(('s_addk', 's_mulk', 's_cmov', 's_bitset')): self.rd |= self.wr
                if 'saveexec' in mn: self.wr |= {'exec_lo', 'exec_hi'}; self.rd |= {'exec_lo', 'exec_hi'}
        else:
            raise ValueError("unknown instruction: " + text)
    def states(self):
        if self.kind in ('label', 'pseudo'): return 0
        return self.n if self.kind == 'nop' else 1

def is_v(r): return r[0] in 'va' and r[1].isdigit()
def is_s(r): return not is_v(r)
XDL_VALU = {4: 8, 8: 12}; XDL_PART = {4: 6, 8: 10}; XDL_WAR = {4: 3, 8: 7}
EXEC = {'exec_lo', 'exec_hi'}
def hazard(p, c):
    n = 0
    if p.kind == 'valu':
        sw = set(r for r in p.wr if is_s(r)); vw = p.wr - sw
        if c.kind == 'valu':
            if (sw - EXEC) & c.xrd:
                n = max(n, 4 if c.mn.startswith(('v_readlane', 'v_writelane', 'v_div_fmas')) else 2)
            if sw & EXEC:
                if c.dpp: n = max(n, 5)
                if c.mn.startswith(('v_readlane', 'v_readfirstlane', 'v_writelane', 'v_permlane')): n = max(n, 4)
                if EXEC & c.xrd: n = max(n, 2)
            if vw & c.rd:
                if c.dpp or c.mn.startswith('v_permlane'): n = max(n, 2)
                if c.mn.startswith(('v_readlane', 'v_readfirstlane')): n = max(n, 1)
                if p.trans or p.opsel: n = max(n, 1)
            if p.opsel and vw & c.wr: n = max(n, 1)
            if p.dot and vw & (c.rd | c.wr):
                same_acc = c.mn == p.mn and not (vw & set(regs_of(c.ops[1]) + regs_of(c.ops[2])))
                if not same_acc: n = max(n, 3)
        elif c.kind == 'mfma':
            if vw & c.rd: n = max(n, 3 if p.dot else 2)
            if sw & EXEC: n = max(n, 4)
        elif c.kind == 'vmem':
            if sw & c.rd: n = max(n, 5)
            if p.dot and vw & c.rd: n = max(n, 3)
        elif c.kind == 'ds':
            if p.dot and vw & c.rd: n = max(n, 3)
        elif c.kind in ('salu', 'smem') and sw & c.rd and p.mn.startswith(('v_readlane', 'v_readfirstlane')):
            n = max(n, 1)
    elif p.kind == 'mfma':
        D = p.wr
        if c.kind == 'mfma':
            if D & c.AB: n = max(n, XDL_VALU[p.passes])
            if D & set(c.C):
                if not (c.C == p.D and c.mn == p.mn): n = max(n, XDL_PART[p.passes])
            if D & c.wr and not (c.D == p.D and c.mn == p.mn): n = max(n, XDL_PART[p.passes])
        elif c.kind in ('valu', 'vmem', 'ds'):
            if D & (c.rd | c.wr): n = max(n, XDL_VALU[p.passes])
            if set(p.C) & c.wr: n = max(n, XDL_WAR[p.passes])
    elif p.kind == 'vmem':
        if p.wide & c.wr: n = max(n, 2 if c.kind in ('valu', 'mfma') else 1)
    elif p.kind == 'salu':
        if 'm0' in p.wr and 'm0' in c.rd and c.kind in ('vmem', 'ds'): n = max(n, 1)
    return n

class Asm:
    def __init__(self):
        self.code = []; self._uid = 0
    def __call__(self, text, tok=None, need=None):
        lines = [l for l in text.split('\n') if l.strip()]
        for k, l in enumerate(lines):
            self.code.append(Ins(l.strip(), tok if k == len(lines) - 1 else None, need if k == 0 else None))
    def need(self, *toks):
        self.code.append(Ins('.need', need=list(toks)))
    def label(self, name): self(name + ':')
    def uid(self, p='L'):
        self._uid += 1; return f"{p}_{self._uid}"
    def nops(self, n):
        while n > 0:
            k = min(n, 16); self(f"s_nop {k-1}"); n -= k

    def _succ(self, code):
        lab = {ins.label: i for i, ins in enumerate(code) if ins.label}
        succ = []
        for i, ins in enumerate(code):
            s = []
            if ins.kind == 'branch':
                s.append(lab[ins.target])
                if ins.mn != 's_branch' and i + 1 < len(code): s.append(i + 1)
            elif ins.kind != 'end' and i + 1 < len(code): s.append(i + 1)
            succ.append(s)
        return succ

    def insert_waits(self, entries):
        code = self.code; succ = self._succ(code)
        lab = {ins.label: i for i, ins in enumerate(code) if ins.label}
        N = len(code); state = [None] * N; waits = [None] * N
        def merge(a, b):
            if a is None: return b, True
            ch = False; out = []
            for x, y in zip(a[:2], b[:2]):
                z = dict(x)
                for k, v in y.items():
                    if k not in z or v < z[k]: z[k] = v; ch = True
                out.append(z)
            sm = a[2] or b[2]; ch |= sm != a[2]
            return (out[0], out[1], sm), ch
        def step(i, st):
            ins = code[i]; vm, lg, sm = dict(st[0]), dict(st[1]), st[2]
            touch = ins.rd | ins.wr | set('#' + t for t in ins.need)
            tv = touch; tl = touch
            if ins.kind == 'vmem': tv = ins.rd | set('#' + t for t in ins.need)
            if ins.kind == 'ds' and not sm: tl = ins.rd | set('#' + t for t in ins.need)
            wv = min([vm[r] for r in tv if r in vm], default=None)
            wl = min([lg[r] for r in tl if r in lg], default=None)
            if wl is not None and sm: wl = 0
            old = waits[i] or (None, None)
            mn = lambda a, b: b if a is None else (a if b is None else min(a, b))
            wv, wl = mn(wv, old[0]), mn(wl, old[1])
            waits[i] = (wv, wl)
            if ins.kind == 'wait': wv, wl = mn(wv, ins.vm), mn(wl, ins.lg)
            if wv is not None: vm = {k: v for k, v in vm.items() if v < wv}
            if wl is not None:
                if wl == 0: lg = {}; sm = False
                elif not sm: lg = {k: v for k, v in lg.items() if v < wl}
            if ins.kind == 'vmem':
                vm = {k: min(v + 1, 63) for k, v in vm.items()}
                for r in ins.wr: vm[r] = 0
                if ins.tok: vm['#' + ins.tok] = 0
            elif ins.kind in ('ds', 'smem'):
                lg = {k: min(v + 1, 15) for k, v in lg.items()}
                for r in ins.wr: lg[r] = 0
                if ins.tok: lg['#' + ins.tok] = 0
                if ins.kind == 'smem': sm = True
            return (vm, lg, sm)
        work = []
        for e in entries:
            state[lab[e]] = ({}, {}, False); work.append(lab[e])
        while work:
            i = work.pop()
            while True:
                out = step(i, state[i]); nxt = None
                for s in succ[i]:
                    st, ch = merge(state[s], out)
                    if ch:
                        state[s] = st
                        if nxt is None: nxt = s
                        else: work.append(s)
                if nxt is None: break
                i = nxt
        new = []
        for i, ins in enumerate(code):
            w = waits[i]
            if w and (w[0] is not None or w[1] is not None):
                t = "s_waitcnt"
                if w[0] is not None: t += f" vmcnt({min(w[0], 62)})"
                if w[1] is not None: t += f" lgkmcnt({min(w[1], 14)})"
                new.append(Ins(t))
            elif ins.text == '.need' and hasattr(ins, 'time'): new.append(Ins('.idle'))
            if ins.text != '.need': new.append(ins)
        self.code = new

    def insert_nops(self):
        changed = True
        while changed:
            changed = False
            code = self.code; succ = self._succ(code)
            pred = [[] for _ in code]
            for i, s in enumerate(succ):
                for j in s: pred[j].append(i)
            new = []; add = {}
            for i, c in enumerate(code):
                if c.kind in ('label', 'pseudo', 'nop', 'wait', 'end', 'branch'): continue
                needn = 0; stack = [(p, 0) for p in pred[i]]; seen = {}
                while stack:
                    j, d = stack.pop()
                    if d >= 12 or seen.get(j, 99) <= d: continue
                    seen[j] = d
                    p = code[j]
                    if p.kind in ('valu', 'mfma', 'vmem', 'salu'):
                        needn = max(needn, hazard(p, c) - d)
                    dd = d + p.states() + add.get(j, 0)
                    for k in pred[j]: stack.append((k, dd))
                if needn > 0:
                    j = i - 1; d = 0
                    while needn > 0 and j >= 0 and d < 12 and code[j].kind not in ('label', 'branch', 'end'):
                        p = code[j]
                        if p.kind in ('valu', 'mfma', 'vmem', 'salu') and hazard(p, c) - d > 0: break
                        if p.text == '.idle':
                            code[j] = Ins('s_nop 0'); needn -= 1; changed = True
                        d += code[j].states() + add.get(j, 0); j -= 1
                    if needn > 0 and not changed: add[i] = needn
            for i, c in enumerate(code):
                if i in add: new.append(Ins(f"s_nop {add[i]-1}")); changed = True
                new.append(c)
            self.code = new

    def finish(self, entries):
        self.insert_waits(entries); self.insert_nops()
        code = []
        for ins in self.code:
            if ins.text == '.idle': continue
            if ins.kind == 'nop' and code and code[-1].kind == 'nop' and code[-1].n + ins.n <= 16:
                code[-1] = Ins(f"s_nop {code[-1].n + ins.n - 1}"); continue
            code.append(ins)
        self.code = code
        return "\n".join((ins.text if ins.kind in ('label',) else ins.text) for ins in self.code if ins.kind != 'pseudo' or ins.text.startswith('.p2align')) + "\n"
```

```python
from asmlib import *
from sched import Block
from layout import *
import math

L_MEM = 0; L_CF = 8192; L_T = 10240; L_X = 14336; L_W = 65536; L_WB = 24576
CSCALE = 128 ** -0.5 * math.log2(math.e)
def f32(x):
    import struct; return hex(struct.unpack('<I', struct.pack('<f', x))[0])

DEFAULT = dict(
    own="Sa Sk Sv Lb Sc R R R R Lb Lc R", q="R R R Lb R R R Lc R Sa R Lb R R R Lc", k="R R R La R R R Lb R R R Lc R R R La", v="R R R Lb R R R R R R R R R R R R",
    o="Sa Sc R R R  Lx R Sb  R Lx R  R Lb Sy  Lx R Lb  R Ly R", wrap='ac', pf1='b', pf2='kv',
    vdirect=True, vown=True, farbar=1, farat=2, lfar=(750, 1000), publish=True,
    pipe=False, spec=(64, 96), pf3='', t3=230, aq0=0, sync=None, d1=(300, 330, 380), ns=(1, 2, 2), gap=(170, 170, 170), dY=(48, 0, 0), dX=200, dp3=None, dg=(48, 48), c12=(90, 240), stamps=False,
)

GROUPS = [{'own': 'Sa Sv R Sb Sc R R R', 'q': 'Lb R R Sz R R Lb R Lc Lz R R Lc R R Lb', 'k': 'R R Lz Sa R R R R R R R Lc R Lb R R', 'v': 'R R La R Lb R R R Lb Lc R R R R R R R R R R', 'o': 'R Sa R R Sb R Lx Ly R Sc Ly R R Lx R R R R R Ly', 'wrap': 'ab', 'pf1': '', 'pf2': 'vc', 'farat': 1, 'lfar': (900, 1200), 'publish': False, 'pf3': 'zk', 'aq0': 130, 'model': {'wcol': 75, 'wds': 52, 'pd': 2, 'bar': 20, 'tag': 'hw', 'fm': 800}, 'slot3': True, 'n2': 2, 'vown': False, 'vdirect': True, 'farbar': 1, 'sstride': 9}, {'publish': True, 'vdirect': False, 'farbar': 2, 'farat': 36, 'own': 'Sa R Sv R R Sb R R R R R Lv', 'q': 'R Sk R R Lv R R Lk R R Sa Lv R Lk R R', 'k': 'R R R Lv R R Lv Sb R R R R R R R R', 'v': 'R R Lp Lr R R Sa R R R R R La R Sb R', 'o': 'La Lb R R R Lx Ly R R R Lx R R Ly R Lx Ly R R R', 'wrap': 'ab', 'pf1': '', 'pf2': 'v', 'lfar': (900, 900), 'pf3': 'k', 'aq0': 0, 'model': {'wcol': 75, 'wds': 52, 'pd': 2, 'bar': 20, 'tag': 'hw'}, 'slot3': False, 'n2': 1, 'vown': True, 'sstride': 9}]
GMAP = [(0, 1, 0, 1, 0, 0, 1, 0)[h % 8] for h in range(32)]

class Chain:
    def __init__(self, a, S, cfg=None):
        self.a = a; self.S = S; self.cfg = dict(DEFAULT); self.cfg.update(cfg or {})
        cfg = self.cfg
        V = self.V = Pool('v', 0, 256); A = Pool('a', 0, 256)
        names = "L16 idx ldsw tw tr xb xr flag".split()
        self.r = r = {}
        for n in names: r[n] = V(1)
        for n, k in (("qa", 8), ("ka", 8), ("va", 8), ("A", 12), ("xs", 4), ("K", 8), ("Vx", 8), ("a", 8), ("b", 8), ("c", 8))[:10 if cfg.get('slot3', True) else 9]: r[n] = V(k, 4)
        r['k'] = r['K']; r['v'] = r['Vx']; r['x'] = r['ka']; r['y'] = r['z'] = r['va']; r['p'] = r['qa']; r['r'] = r['K']
        sp = []
        self.ownm = ownm = 'qkv' if cfg['vown'] else 'qk'
        keys = [(m, p, t) for p in (0, 1) for m in ownm for t in (0, 1)]
        self.porder = po = {m: list(range(2 if m in ownm else 0, 10)) for m in 'qkv'}
        po['v'] = po['v'][-2:] + po['v'][:-2]
        for m in 'qkv': keys += [(m, p, t) for p in po[m] for t in (0, 1)]
        keys += [('o', u, 0) for u in range(5)] + [('o', u, x) for u in range(5) for x in (1, 2, 3)]
        src = " ".join(cfg[p] for p in ('own', 'q', 'k', 'v', 'o')).split()
        assert len(src) == 80 == len(keys), len(src)
        self.src = dict(zip(keys, src)); self.keys = keys
        self.reg = {}; self.lidx = {}; self.sidx = {}
        for k in keys:
            s = self.src[k]
            if s == 'R': self.reg[k] = A(8, 4) if A.nfree() >= 8 else V(8, 4)
            else:
                self.reg[k] = r[s[1]]
                d = self.lidx if s[0] == 'L' else self.sidx
                d[k] = len(d)
        self.nS = len(self.sidx); self.nL = len(self.lidx)
        assert self.nL <= 18
        print("chain tiles: resident", 80 - self.nS - self.nL, "lds", self.nL, "stream", self.nS, "free v", V.nfree())
        sn = "h w step tag mask sKV sML sFkv sFml pub pubo t0 t1 t2 t3 spin last lim lead need c lay lo rng".split()
        self.s = {n: S(1) for n in sn}
        self.s['t64'] = S(2); self.s['m33'] = S(2); self.s['one'] = S(4); self.s['pP'] = S(10, 2)
        for n in ('pKV', 'pSy', 'pSyw', 'pRed', 'pM', 'pG0', 'pG1', 'pN0', 'pN1'): self.s[n] = S(2)
        self.pS = [S(2) for _ in range((self.nS + 3) // 4)]
        self.s['wsrd'] = S.at(96, 4)
        for i, n in enumerate(('sS', 'sP', 'sRed', 'sM', 'task', 'sSy', 'sSyw')): self.s[n] = S.at(89 + i)
        if cfg['stamps']:
            pass

    def tile_load(self, k, emit):
        r, s, WS = self.r, self.s, self.WS; reg = self.reg[k]
        if k in self.lidx:
            i = self.lidx[k]; ad, off = (r['ldsw'], i*2048) if i < 12 else (r['L16'], 16384 + self.w*12288 + (i-12)*2048)
            for j in range(2): emit(f"ds_read_b128 {reg.sub(4*j,4)}, {ad} offset:{off + j*1024}")
        else:
            i = self.sidx[k] % self.cfg.get('salias', 99)
            for j in range(2): emit(f"global_load_dwordx4 {reg.sub(4*j,4)}, {r['L16']}, {self.pS[i // 4]} offset:{(i%4)*2048 + j*1024 - 4096} {self.cfg.get('stf','sc1')}")

    def ptr(self, dst, off, const):
        if const and off is not None: self.a(f"s_add_u32 {dst[0]}, {off}, {const}"); off = dst[0]
        self.a(f"s_add_u32 {dst[0]}, {self.WS[0]}, {const if off is None else off}\ns_addc_u32 {dst[1]}, {self.WS[1]}, 0")

    def kv_load(self, which, emit):
        r = self.r; o = 0 if which == 'k' else 2048
        return [emit(f"global_load_dwordx4 {r[which].sub(4*j,4)}, {r['L16']}, {self.s['pKV']} offset:{o+j*1024} {self.cfg.get('kvf','nt sc1')}") for j in range(2)]

    def rst(self, y, z):
        L = self.r['L16']
        return f"""v_and_b32 {y}, 32, {L}
        v_bfe_u32 {z}, {L}, 6, 1
        v_lshl_add_u32 {y}, {z}, 8, {y}
        v_bfe_u32 {z}, {L}, 8, 1
        v_lshl_add_u32 {y}, {z}, 4, {y}
        v_bfe_u32 {z}, {L}, 4, 1
        v_lshl_add_u32 {y}, {z}, 3, {y}"""

    def st3(self, i):
        if self.cfg['stamps'] == 3: self.a(f"s_mem{'real' if i == 7 else ''}time {self.s['st'].sub(2*i,2)}")

    def stamp(self, emit, i):
        if self.cfg['stamps'] == 2 and not ('probe' in self.cfg and i in (2, 3)): emit(f"s_memtime {self.s['st'].sub(2*i,2)}")

    def setup(self, WS, DBG, fail):
        a, r, s = self.a, self.r, self.s; self.WS = WS; self.DBG = DBG; self.fail = fail
        self.fsh, self.nrep = self.cfg.get('fl', (7, 1))
        self.dch = 4 if self.cfg.get('multi') else D_CH * 4
        h, w = s['h'], s['w']; t0, t1, t2, t3 = s['t0'], s['t1'], s['t2'], s['t3']
        T = r['a']; lane, n, g, x, y, z = T[0], T[1], T[2], T[3], T[4], T[5]
        a(f"""
        v_and_b32 {lane}, 63, v0
        v_and_b32 {n}, 15, {lane}
        v_lshrrev_b32 {g}, 4, {lane}
        v_lshlrev_b32 {r['L16']}, 4, {lane}
        v_and_b32 {x}, 2, {lane}
        v_mov_b32 {y}, 0x4444
        v_mov_b32 {z}, 0xeeee
        v_cmp_eq_u32 vcc, 0, {x}
        v_cndmask_b32 {r['idx']}, {z}, {y}, vcc
        s_mul_i32 {t0}, {w}, {L_WB}
        s_add_u32 {t0}, {t0}, {L_W}
        v_add_u32 {r['ldsw']}, {t0}, {r['L16']}
        ; T write: L_T + w*1024 + n*32 + ((g ^ (n>>2))*8)
        v_lshrrev_b32 {x}, 2, {n}
        v_xor_b32 {y}, {g}, {x}
        v_lshlrev_b32 {y}, 3, {y}
        v_lshl_add_u32 {y}, {n}, 5, {y}
        s_lshl_b32 {t0}, {w}, 10
        s_add_u32 {t0}, {t0}, {L_T}
        v_add_u32 {r['tw']}, {t0}, {y}
        ; T read: L_T + (4g + (n>>2))*32 + (((n&3) ^ g)*8)
        v_lshl_add_u32 {y}, {g}, 2, {x}
        v_and_b32 {z}, 3, {n}
        v_xor_b32 {z}, {z}, {g}
        v_lshlrev_b32 {z}, 3, {z}
        v_lshl_add_u32 {y}, {y}, 5, {z}
        v_add_u32 {r['tr']}, {L_T}, {y}
        ; X read: L_X + g*128 + (2*(n>>2) + (n&1))*16
        v_and_b32 {z}, 1, {n}
        v_lshl_add_u32 {y}, {x}, 1, {z}
        v_lshlrev_b32 {y}, 4, {y}
        v_lshl_add_u32 {y}, {g}, 7, {y}
        v_add_u32 {r['xb']}, {L_CF}, {y}
        v_bfe_u32 {z}, {n}, 1, 1
        v_mul_u32_u24 {z}, 640, {z}
        v_xor_b32 {r['xr']}, {z}, {r['xb']}
        s_mov_b32 {s['m33'][0]}, 0x33333333
        s_mov_b32 {s['m33'][1]}, 0x33333333
        s_mov_b32 {s['one'][0]}, 0x3f803f80
        s_mov_b32 {s['one'][1]}, 0x3f803f80
        s_mov_b32 {s['one'][2]}, 0x3f803f80
        s_mov_b32 {s['one'][3]}, 0
        s_mov_b32 {s['lo']}, {(127-40) << 23}
        s_mov_b32 {s['rng']}, {80 << 23}
        v_lshlrev_b32 {y}, 3, {n}
        v_lshl_add_u32 {r['flag']}, {g}, 12, {y}
        s_lshl_b32 {t0}, {w}, 14
        s_lshl_b32 {t1}, {h}, 7
        s_add_u32 {t0}, {t0}, {t1}
        s_add_u32 {s['sP']}, {t0}, {P_OFF}
        s_lshl_b32 {t0}, {w}, 5
        s_add_u32 {s['task']}, {t0}, {h}
        s_lshl_b32 {t0}, {s['task']}, 12
        s_add_u32 {s['sRed']}, {t0}, {P_OFF}
        s_lshr_b32 {t0}, {s['task']}, 2
        s_lshl_b32 {t0}, {t0}, 9
        s_and_b32 {t1}, {s['task']}, 3
        s_lshl_b32 {t1}, {t1}, 6
        s_add_u32 {t0}, {t0}, {t1}
        s_add_u32 {s['sM']}, {t0}, {M_OFF}
        s_lshl_b32 {t0}, {h}, 8
        s_add_u32 {s['sFkv']}, {t0}, {F_KV}
        s_lshl_b32 {t0}, {s['pub']}, 7
        s_add_u32 {t0}, {t0}, {F_ML}
        s_cmp_lt_u32 {s['pub']}, 10
        s_cselect_b32 {s['sFml']}, {t0}, {WS_SIZE}
        s_cselect_b32 {s['pub']}, {s['pub']}, 0
        s_cselect_b32 {s['pubo']}, {ML_OFF}, {s['sFml']}
        s_lshl_b32 {s['pub']}, {s['pub']}, 10
        s_and_b32 {t0}, {h}, {self.nrep - 1}
        s_lshl_b32 {t0}, {t0}, {self.fsh + 5}
        s_add_u32 {s['sSy']}, {t0}, {SY_OFF}
        s_lshl_b32 {t0}, {h}, {self.fsh}
        s_add_u32 {s['sSyw']}, {t0}, {SY_OFF}
        s_mov_b32 {s['c']}, {f32(CSCALE)}
        s_lshl_b32 {t0}, {h}, 2
        s_add_u32 {t0}, {t0}, {w}
        s_mul_i32 {t1}, {t0}, {self.cfg.get('sstride', min(self.nS, self.cfg.get('salias', 99))) * 2048}
        s_add_u32 {s['sS']}, {t1}, {self.cfg.get('wss', WS_S)}
        """)
        for u in range(5): self.ptr(s['pP'].sub(2*u, 2), s['sP'], u*65536)
        for i, x_ in enumerate(self.pS): self.ptr(x_, s['sS'], i*8192 + 4096)
        self.ptr(s['pSy'], s['sSy'], 0); self.ptr(s['pSyw'], s['sSyw'], 0); self.ptr(s['pRed'], s['sRed'], 0); self.ptr(s['pM'], s['sM'], 0)
        Z = r['b']
        a(f"v_mov_b32 {Z[0]}, 0\nv_mov_b32 {Z[1]}, 0\ns_mov_b32 {t0}, {s['sP']}")
        for u in range(5):
            a(f"buffer_store_dwordx2 {Z[0:2]}, {r['flag']}, {WS}, {t0} offen\ns_add_u32 {t0}, {t0}, 65536")
        for i in range(self.nrep): a(f"buffer_store_dword {Z[0]}, off, {WS}, {s['sSyw']} offset:{(32 << self.fsh)*i}")
        srd = s['wsrd']
        skip = a.uid('nm0')
        a(f"""
        s_load_dwordx2 {srd[0:2]}, s[0:1], {K_MEM0}
        s_mov_b32 {srd[2]}, 10240
        s_mov_b32 {srd[3]}, 0x20000
        s_cmp_ge_u32 {s['task']}, 80
        s_cbranch_scc1 {skip}
        s_and_b32 {t0}, {s['task']}, 3
        s_mul_i32 {t0}, {t0}, 2560
        s_lshr_b32 {t1}, {s['task']}, 2
        s_lshl_b32 {t1}, {t1}, 6
        s_add_u32 {t0}, {t0}, {t1}
        v_bfe_u32 {y}, {n}, 1, 2
        v_lshlrev_b32 {y}, 4, {y}
        v_and_b32 {z}, 1, {n}
        v_lshl_add_u32 {y}, {z}, 2, {y}
        v_and_b32 {z}, 1, {g}
        v_mul_u32_u24 {z}, 1280, {z}
        v_add_u32 {y}, {y}, {z}
        buffer_load_dword {Z[2]}, {y}, {srd}, {t0} offen
        buffer_load_dword {Z[3]}, {y}, {srd}, {t0} offen offset:8
        {self.rst(y, z)}
        s_add_u32 {t1}, {s['sM']}, {M0_OFF - M_OFF}
        buffer_store_dwordx2 {Z[0:2]}, {y}, {WS}, {s['sM']} offen
        buffer_store_dwordx2 {Z[2:4]}, {y}, {WS}, {t1} offen
        {skip}:
        s_waitcnt vmcnt(0) lgkmcnt(0)
        s_barrier
        """)
        if not self.cfg.get('bench'):
            a(f"s_cmp_eq_u32 {w}, 0\ns_cselect_b32 {t0}, {self.dch}, {DBG[2]}\nv_mov_b32 {Z[2]}, 1\ns_mov_b64 exec, 1\nbuffer_atomic_add {Z[2]}, off, {DBG}, {t0}\ns_mov_b64 exec, -1")
        if self.cfg.get('bench') or self.cfg.get('multi'):
            for i in range(256): a(f"v_accvgpr_write_b32 a{i}, 0")
            for i in range(8, 256, 2): a(f"v_mov_b64 v[{i}:{i+1}], 0")
            a(f"s_mul_i32 {t0}, {w}, 40960\nv_add_u32 {r['flag']}, {t0}, {r['L16']}")
            for i in range(40): a(f"ds_write_b128 {r['flag']}, v[8:11] offset:{i*1024}")
            a(f"s_waitcnt vmcnt(0) lgkmcnt(0)\ns_barrier\ns_mov_b32 {s['tag']}, 0\ns_mov_b32 {s['lay']}, 0")
            if self.cfg.get('multi'):
                self.S.free(*[s[x_] for x_ in ('sS', 'sP', 'sRed', 'sM', 'task', 'sSy', 'sSyw', 'wsrd')]); self.meet()
            return
        AD = r['A']; gq, go = AD[0:4], AD[4:8]; lq, lo = AD[8:10], AD[10:12]
        a(f"""
        v_lshrrev_b32 {x}, 3, {lane}
        v_and_b32 {y}, 7, {lane}
        v_lshlrev_b32 {y}, 4, {y}
        v_lshl_add_u32 {gq[0]}, {x}, 13, {y}
        v_mul_u32_u24 {x}, 1280, {x}
        v_add_u32 {go[0]}, {x}, {y}
        v_lshrrev_b32 {x}, 1, {g}
        v_lshlrev_b32 {x}, 4, {x}
        v_and_b32 {y}, 1, {g}
        v_lshl_add_u32 {x}, {y}, 1, {x}
        v_lshrrev_b32 {y}, 3, {n}
        v_lshl_add_u32 {x}, {y}, 3, {x}
        v_bfe_u32 {y}, {n}, 2, 1
        v_add_u32 {x}, {x}, {y}
        v_and_b32 {z}, 3, {n}
        v_lshlrev_b32 {lq[0]}, 4, {z}
        v_lshl_add_u32 {lq[0]}, {x}, 7, {lq[0]}
        v_lshl_add_u32 {x}, {g}, 2, {y}
        v_lshlrev_b32 {lo[0]}, 4, {z}
        v_lshl_add_u32 {lo[0]}, {x}, 7, {lo[0]}
        v_lshrrev_b32 {y}, 3, {n}
        v_lshl_add_u32 {lo[0]}, {y}, 3, {lo[0]}
        s_lshl_b32 {t3}, {w}, 12
        s_and_b32 {t0}, {w}, 1
        s_lshl_b32 {t0}, {t0}, 6
        s_add_u32 {t0}, {t0}, {t3}
        v_add_u32 {lq[0]}, {t0}, {lq[0]}
        v_add_u32 {lo[0]}, {t0}, {lo[0]}
        v_xor_b32 {lq[1]}, 4096, {lq[0]}
        v_xor_b32 {lo[1]}, 4096, {lo[0]}
        """)
        for j in range(1, 4): a(f"v_add_u32 {gq[j]}, {j*(8*8192 - 1024)}, {gq[0]}\nv_add_u32 {go[j]}, {j*(8*1280 - 1024)}, {go[0]}")
        B = self.S(5, 1)
        a(f"s_lshr_b32 {t2}, {w}, 1\ns_lshl_b32 {t2}, {t2}, 7\ns_lshl_b32 {t1}, {h}, 8\ns_add_u32 {t1}, {t1}, {t2}")
        for xp in range(2):
            a(f"""s_xor_b32 {t0}, {w}, {2*xp}
            s_lshl_b32 {B[xp]}, {t0}, 19
            s_add_u32 {B[xp]}, {B[xp]}, {t1}
            s_lshl_b32 {B[3+xp]}, {h}, 2
            s_add_u32 {B[3+xp]}, {B[3+xp]}, {t0}
            s_mul_i32 {B[3+xp]}, {B[3+xp]}, {32*1280}
            s_add_u32 {B[3+xp]}, {B[3+xp]}, {t2}""")
        a(f"s_and_b32 {t0}, {w}, 1\ns_add_u32 {t0}, {t0}, 8\ns_lshl_b32 {B[2]}, {t0}, 19\ns_add_u32 {B[2]}, {B[2]}, {t1}")
        wp = {m: s[x_] for m, x_ in zip('qkvo', ('pG0', 'pG1', 'pN0', 'pN1'))}
        for m, off in zip('qkvo', (K_WQ, K_WK, K_WV, K_WO)): a(f"s_load_dwordx2 {wp[m]}, s[0:1], {off}")
        a(f"s_mov_b32 {srd[2]}, {640*4096*2}")
        rounds = []
        for m in 'kvq':
            for xp, f in ((0, 0), (0, 1), (1, 0), (1, 1), (2, 0)):
                for hh in (0, 1):
                    pos = (4*xp + f, 4*xp + 2 + f) if xp < 2 else (8, 9)
                    rounds.append((m, B[xp], (f << 21) + (hh << 18), [((m, pos[o], t), hh, lq[o], t*8, 512) for o in (0, 1) for t in (0, 1)]))
        for u in range(5):
            for xp in range(2):
                rounds.append(('o', B[3+xp], 256*u, [(('o', u, 2*xp + o), hh, lo[o], hh*2048, 256) for o in (0, 1) for hh in (0, 1)]))
        def issue(ci):
            m, base, const, _ = rounds[ci]
            if ci % 10 == 0: a(f"s_mov_b64 {srd[0:2]}, {wp[m]}")
            a(f"s_add_u32 m0, {t3}, {(ci % 4)*16384}\ns_add_u32 {t0}, {base}, {const}")
            for j in range(4): a(f"buffer_load_dwordx4 {(go if m == 'o' else gq)[j]}, {srd}, {t0} offen offset:{j*1024} lds", tok=f"ch{ci}")
        held = [r[x_] for x_ in ('qa', 'ka', 'va', 'K', 'Vx', 'a')]
        tmp = [r['b'][0:4], r['b'][4:8]] + ([r['c'][0:4], r['c'][4:8]] if 'c' in r else [])
        for ci in range(3): issue(ci)
        def rnd(ci):
            parts = rounds[ci][3]
            a.need(f"ch{ci}", 'trd'); a("s_barrier")
            if ci + 3 < len(rounds): issue(ci + 3)
            st = []
            def put():
                for k, hh, dst in st:
                    if k in self.lidx: a(f"ds_write_b128 {r['ldsw']}, {dst} offset:{self.lidx[k]*2048 + hh*1024}")
                    else:
                        i = self.sidx[k] % self.cfg.get('salias', 99)
                        a(f"global_store_dwordx4 {r['L16']}, {dst}, {self.pS[i // 4]} offset:{(i % 4)*2048 + hh*1024 - 4096}")
                st.clear()
            for i, (k, hh, ad, off, qs) in enumerate(parts):
                if len(st) == len(tmp): put()
                if self.src[k] == 'R': dst = self.reg[k].sub(4*hh, 4)
                elif k in self.lidx and self.lidx[k] >= 12: dst = held[self.lidx[k] - 12].sub(4*hh, 4)
                else: dst = tmp[len(st)]; st.append((k, hh, dst))
                for q in (0, 1): a(f"ds_read_b64_tr_b16 {dst.sub(2*q, 2)}, {ad} offset:{(ci % 4)*16384 + off + q*qs}", tok="trd")
            put()
        def rest():
            for ci in range(36, 40): rnd(ci)
            x = r['xs'][3]
            a(f"s_waitcnt lgkmcnt(0)\ns_barrier\ns_mul_i32 {t0}, {w}, 12288\nv_add_u32 {x}, {t0}, {r['L16']}")
            for i in range(12, self.nL):
                for hh in (0, 1): a(f"ds_write_b128 {x}, {held[i-12].sub(4*hh, 4)} offset:{16384 + (i-12)*2048 + hh*1024}")
        for ci in range(36): rnd(ci)
        xs = r['xs']; a(f"v_lshrrev_b32 {xs[0]}, 4, {r['L16']}")
        self.allin(rest, xs[0], xs[0], xs[1], xs[2], s['spin'])
        a(f"s_waitcnt vmcnt(0) lgkmcnt(0)\ns_barrier\ns_mov_b32 {s['tag']}, 0\ns_mov_b32 {s['lay']}, 0")
        self.S.free(B, *[s[x_] for x_ in ('sS', 'sP', 'sRed', 'sM', 'task', 'sSy', 'sSyw', 'wsrd')])

    def meet(self):
        a, s, DBG, fail = self.a, self.s, self.DBG, self.fail; w = s['w']; x, y = self.r['xs'][0], self.r['xs'][1]
        l1, l2 = a.uid('cb'), a.uid('cb')
        a(f"""
        s_cmp_lg_u32 {w}, 0
        s_cbranch_scc1 {l2}
        v_mov_b32 {x}, {self.dch}
        s_mov_b64 exec, 1
        s_mov_b32 {s['spin']}, 0
        {l1}:
        buffer_load_dword {y}, {x}, {DBG}, 0 offen sc1
        s_add_u32 {s['spin']}, {s['spin']}, 1
        s_cmp_gt_u32 {s['spin']}, {SPIN_MAX}
        s_cbranch_scc1 {fail}
        v_cmp_gt_u32 vcc, 32, {y}
        s_cbranch_vccnz {l1}
        s_mov_b64 exec, -1
        {l2}:
        s_waitcnt vmcnt(0) lgkmcnt(0)
        s_barrier
        s_mov_b32 {s['tag']}, 0
        s_mov_b32 {s['lay']}, 0
        """)

    def kvwait(self):
        a, r, s = self.a, self.r, self.s
        l0, l1, l2 = a.uid('kv'), a.uid('kv'), a.uid('kv')
        a(f"""
        v_cmp_gt_u32 vcc, {s['need']}, {r['flag']}
        s_cmp_eq_u32 vcc_hi, 0
        s_cbranch_scc1 {l2}
        s_mov_b32 {s['spin']}, 0
        {l1}:
        v_and_b32 {r['flag']}, 128, {r['L16']}
        buffer_load_dword {r['flag']}, {r['flag']}, {self.WS}, {s['sFkv']} offen sc1
        s_add_u32 {s['spin']}, {s['spin']}, 1
        s_cmp_gt_u32 {s['spin']}, {SPIN_MAX}
        s_cbranch_scc1 {self.fail}
        v_cmp_gt_u32 vcc, {s['need']}, {r['flag']}
        s_cbranch_vccnz {l1}
        {l2}:
        """)

    def prefill(self, which):
        for sl in which:
            ks = [k for k in self.keys if self.src[k][1:] == sl]
            if ks: self.tile_load(ks[0], self.a)
            elif sl == 'k' or (sl == 'v' and not self.cfg['vdirect']): self.kv_load(sl, self.a)

    def zero(self, regs):
        for R in regs:
            for i in range(0, R.n, 2): self.a(f"v_mov_b64 {R.sub(i,2)}, 0")

    def body(self, verbose=False):
        a, s, cfg = self.a, self.s, self.cfg
        if cfg['stamps']: s['st'] = self.S(16 if cfg['stamps'] == 3 else 8, 2); s['acc'] = [self.S(1) for _ in range(4)]; s['rc'] = self.S(2); s['rt'] = self.S(1)
        if cfg['stamps']: a(f"s_memrealtime {s['t64']}\ns_waitcnt lgkmcnt(0)\ns_sub_u32 {s['acc'][3]}, {s['t64'][0]}, s3")
        if cfg.get('sel'): s['mk'] = self.S(4, 2)
        labs = [a.uid('wave') for _ in range(4)]
        for w in range(1, 4): a(f"s_cmp_eq_u32 {s['w']}, {w}\ns_cbranch_scc1 {labs[w]}")
        self.order = cfg.get('order'); self.blks = []
        for w in range(4):
            a(f"{labs[w]}:"); self.wave(w, verbose and w == 0)
            if cfg.get('schedonly'): return

    def wave(self, w, verbose):
        a, r, s, WS, cfg = self.a, self.r, self.s, self.WS, self.cfg; self.w = w
        A = [r['A'].sub(4 * i, 4) for i in range(3)]
        ab = cfg.get('ab', ''); L16 = r['L16']
        acc = {m: [r[m + 'a'].sub(0, 4), r[m + 'a'].sub(4, 4)] for m in 'qkv'}
        qa, ka, va, K, Vx, xs = (r[n] for n in ('qa', 'ka', 'va', 'K', 'Vx', 'xs'))
        nb0 = len(a.code); zr = [qa, ka, va] if cfg['vown'] else [qa, ka]
        LAYER, GATHER, RARE, BACK, EXIT = (a.uid(x) for x in ('layer', 'gather', 'rare', 'back', 'exit'))
        direct = cfg['vdirect']; fb = cfg['farbar']; far_at = self.keys[cfg['farat']]
        own = [w, 4 + w] + ([8 + w] if w < 2 else [])
        frag = lambda p: 4 * (p & 1) + (w ^ (p >> 1)) if p < 8 else p ^ (w & 1)
        gad = lambda j: f"{s['pG1' if j == 2 else 'pG0']} offset:{(j - 1)*4096 if j < 2 else 0}"
        def pfaddr():
            if 'F' in ab: a(f"v_mov_b32 {r['flag']}, -1"); return
            if w == 3: a(f"v_and_b32 {r['flag']}, 128, {L16}\nv_add_u32 {r['flag']}, {s['sFkv']}, {r['flag']}\ns_mov_b32 exec_hi, 0")
            a(f"v_and_b32 {r['flag']}, {0xff if direct else 0x1ff}, {L16}\nv_lshl_add_u32 {r['flag']}, {r['flag']}, 3, {s['t1']}")
            if w == 3: a("s_mov_b32 exec_hi, -1")
        def gather(lab):
            a(f"{lab}:")
            for j in range(len(own)): a(f"global_load_dwordx4 {A[j]}, {L16}, {gad(j)} sc1")
            a(f"s_add_u32 {s['spin']}, {s['spin']}, 1\ns_cmp_gt_u32 {s['spin']}, {SPIN_MAX}\ns_cbranch_scc1 {self.fail}")
            for j in range(len(own)): a(f"v_bitop3_b32 {xs[j]}, {A[j][0]}, {A[j][2]}, {s['tag']} bitop3:0x7e")
            if len(own) == 3: a.code.insert(len(a.code) - 1, Ins(f"v_or_b32 {xs[0]}, {xs[0]}, {xs[1]}"))
            a(f"v_bitop3_b32 {xs[0]}, {xs[0]}, {xs[len(own)-1]}, {s['mask']} bitop3:0xa8\nv_cmp_ne_u32 vcc, 0, {xs[0]}\ns_cbranch_vccnz {lab}")
        pipe = cfg['pipe']; sync = cfg['sync']; PACE = a.uid('pace')
        GL = [A[0], A[1], xs if pipe else A[2]]; GT = [A[2][0], A[2][0], xs[1]]; RT = [a.uid('rt') for _ in range(3)]
        def gload(j): a(f"global_load_dwordx4 {GL[j]}, {L16}, {gad(j)} sc1")
        def gwrite(e, j, **kw): return e(f"ds_write_b128 {L16}, {GL[j]} offset:{(4*j + w)*1024}", **kw)
        def gcheck(j): return f"v_bitop3_b32 {GT[j]}, {GL[j][0]}, {GL[j][2]}, {s['tag']} bitop3:0x7e\nv_and_b32 {GT[j]}, {s['mask']}, {GT[j]}\nv_cmp_ne_u32 vcc, 0, {GT[j]}"
        def trace():
            if cfg['stamps'] != 3: return
            d_, a_ = (A[2][2], A[2][3]) if pipe or w >= 2 else (xs[2], xs[3])
            for i in range(8): a(f"v_writelane_b32 {d_}, {s['st'][2*i]}, {i}")
            a(f"v_lshrrev_b32 {a_}, 2, {L16}\ns_lshl_b32 {s['t0']}, {s['h']}, 9\ns_add_u32 {s['t0']}, {s['t0']}, {s['step']}\ns_lshl_b32 {s['t0']}, {s['t0']}, 6\ns_add_u32 {s['t0']}, {s['t0']}, {14*MB + w*8192}")
            a(f"s_mov_b64 exec, 0xffff\nbuffer_store_dword {d_}, {a_}, {WS}, {s['t0']} offen\ns_mov_b64 exec, -1")
        a(f"""
        {LAYER}:
        s_lshl_b32 {s['step']}, {s['lay']}, 6
        {f"s_mov_b32 {s['t1']}, {cfg['multi']}" if cfg.get('multi') else f"s_mul_i32 {s['t1']}, {s['lay']}, {KV_LAYER}"}
        s_mul_i32 {s['t2']}, {s['h']}, {KV_HEAD}
        s_add_u32 {s['t1']}, {s['t1']}, {s['t2']}
        s_add_u32 {s['sKV']}, {s['t1']}, {KV_OFF + w*4096}
        s_mul_i32 {s['t1']}, {s['step']}, {ML_STEP}
        s_add_u32 {s['t1']}, {s['t1']}, {s['pub']}
        s_add_u32 {s['sML']}, {s['t1']}, {s['pubo']}
        s_mov_b32 {s['mask']}, 0
        s_mov_b32 {s['lead']}, {WS[2]}
        s_add_u32 {s['need']}, {s['step']}, 1
        s_add_u32 {s['last']}, {s['step']}, {cfg.get('nst', 63)}
        s_add_u32 {s['lim']}, {s['step']}, 64
        s_mov_b32 {s['t1']}, {s['sKV']}
        v_mov_b32 {r['flag']}, 0
        """)
        for j in range(2):
            self.ptr(s['pG%d' % j], None, M0_OFF + w*1024 + 4096*(j+1)); self.ptr(s['pN%d' % j], None, (M0_OFF if 'iso' in cfg or cfg.get('bench') else M_OFF) + w*1024 + 4096*(j+1))
        self.ptr(s['pKV'], s['sKV'], 0)
        late = [sl for sl in 'kv' if not any(x[1:] == sl for x in self.src.values())]
        self.prefill([sl for sl in 'abckvz' if sl not in late]); self.zero(zr)
        if cfg.get('tlb') and w == 1:
            a(f"v_min_u32 {xs[0]}, {31*16}, {L16}\nv_lshlrev_b32 {xs[0]}, 16, {xs[0]}\nglobal_load_dword {xs[0]}, {xs[0]}, {s['pKV']} nt sc1")
        if w == 0: self.kvwait()
        a("s_barrier"); self.prefill(late); pfaddr()
        if cfg['stamps']:
            a(f"s_memrealtime {s['t64']}\ns_waitcnt lgkmcnt(0)\ns_mov_b32 {s['rt']}, {s['t64'][0]}")
            a(f"s_mov_b64 {s['rc']}, 0")
            for i in range(4): a(f"s_memtime {s['st'].sub(2*i,2)}")
        for j in range(len(own)): gload(j)
        if w == 2: a(f"v_mov_b32 {xs[1]}, -1")
        a(f"s_mov_b32 {s['spin']}, 0\ns_waitcnt vmcnt(0)\n.p2align 6\n{GATHER}:")
        def allcheck():
            T_ = xs if w < 2 else A[2]
            for j in range(len(own)):
                if j == 2: a(f"v_or_b32 {T_[0]}, {T_[0]}, {T_[1]}")
                a(f"v_bitop3_b32 {T_[min(j,1)]}, {A[j][0]}, {A[j][2]}, {s['tag']} bitop3:0x7e")
            a(f"v_bitop3_b32 {T_[0]}, {T_[0]}, {T_[1]}, {s['mask']} bitop3:0xa8\nv_cmp_ne_u32 vcc, 0, {T_[0]}")
        spec = cfg['spec']
        if pipe: a(gcheck(0))
        elif not spec: allcheck()
        if not spec: a(f"s_cbranch_vccnz {RT[0]}")
        else:
            x_ = Ins('.need'); x_.rd = set(str(A[0][i]) for i in range(4)); a.code.append(x_)
        a(f"{RT[0]}_b:"); self.st3(0)
        if cfg['stamps'] == 2:
            st = s['st']; D_ = A[2] if pipe else xs
            a(f"s_memtime {s['t64']}\ns_waitcnt lgkmcnt(0)")
            a(f"s_sub_u32 {s['t0']}, {s['t64'][0]}, {st[0]}\nv_mov_b32 {D_[0]}, {s['t0']}")
            for i in (1, 2, 3): a(f"s_sub_u32 {s['t0']}, {st[2*i]}, {st[0]}\nv_mov_b32 {D_[i]}, {s['t0']}")
            a(f"s_lshl_b32 {s['t0']}, {s['h']}, 9\ns_add_u32 {s['t0']}, {s['t0']}, {s['step']}\ns_lshl_b32 {s['t0']}, {s['t0']}, 4\ns_add_u32 {s['t0']}, {s['t0']}, {0x80000 + w*2048}")
            a(f"s_mov_b64 exec, 1\nbuffer_store_dwordx4 {D_}, off, {WS}, {s['t0']}\ns_mov_b64 exec, -1")
            a(f"s_memtime {st[0:2]}\ns_waitcnt lgkmcnt(0)")
        b = Block()
        order = [k for k in self.keys if self.src[k] != 'R']
        def masked(nd, m): nd.pre = [Ins(f"s_mov_b64 exec, {m}")]; nd.ins.append(Ins("s_mov_b64 exec, -1"))
        def mm(k, D, Afrag):
            nd = b(f"v_smfmac_f32_16x16x64_bf16 {D}, {Afrag}, {self.reg[k]}, {r['idx']}")
            if spec and k[0] != 'o' and k[1] == 1: nd.not_before = spec[0]
            sl = self.src[k]; n_ = len(b.nodes)
            if sl[1:] and sl[1] in cfg['pf3'] and k == [x for x in order if self.src[x][1] == sl[1]][0]: nd.not_before = cfg['t3'] + 128 * cfg['pf3'].index(sl[1])
            if sl != 'R':
                later = [x for x in order[order.index(k) + 1:] if self.src[x][1] == sl[1]]
                if later: self.tile_load(later[0], b)
                elif sl[1] in cfg['wrap']: self.tile_load([x for x in order if self.src[x][1] == sl[1]][0], b)
                elif sl[1] == 'k' or (sl[1] == 'v' and not direct):
                    assert self.keys.index(k) <= cfg['farat']
                    self.kv_load(sl[1], b)
                elif sl[1] == 'v': assert self.keys.index(k) <= cfg['farat']
            for nd in b.nodes[n_:]: nd.rd.add('@chk')
            if k == far_at: (bar1 if fb == 1 else qpost if fb == 2 else bar3)()
        def self_last(): return b.nodes[-1].ins[0].kind == 'mfma'
        def publish(e, **kw):
            n = [e(f"v_add_u32 {xs[0]}, {s['pub']}, {L16}"), e(f"ds_read_b128 {xs}, {xs[0]}", **kw), e(f"v_swap_b32 {xs[1]}, {xs[2]}"),
                 e(f"buffer_store_dwordx4 {xs}, {L16}, {WS}, {s['sML']} offen sc1")]
            return n
        def far():
            if direct:
                for nd in self.kv_load('v', b): nd.flag = 1; nd.lat = cfg['lfar'][0]
            nd = b(f"global_load_dword {r['flag']}, {r['flag']}, {WS[0:2]} {cfg.get('pff', 'sc1')}", lat=cfg['lfar'][1])
            nd.flag = 1; nd.svc = 96; nd.units = 2 if direct else 4
        def log():
            if cfg['publish']:
                n = publish(b, rd=['@b1c']); n[-1].lat = 700; n[-1].svc = 16
                n += [b(f"v_mov_b32 {xs[3]}, {s['step']}"), b(f"buffer_store_dword {xs[3]}, off, {WS}, {s['lead']} sc1", lat=700)]
                masked(n[-1], 1); n[-1].svc = 8
                for nd in n: nd.skip = w != 3
        VO = ['@vmorder']
        def bar1():
            b("s_barrier", done=['w1c'] if pipe else ['w1', 'w1c'], rd=['@c2'] + (VO if fb == 1 else []), wr=['@b1c'] + ([] if pipe else ['@b1']) + (VO if fb == 1 else []))
            if fb == 1: far()
            if pipe and fb == 1: log()
        def bar3():
            b("s_barrier", rd=VO, wr=VO); far(); log()
            if far_at[0] == 'k': qpost()
        no = 4 * len(self.ownm)
        assert cfg['farat'] < no + 12 * pipe if fb == 1 else no + (15 if fb == 2 else 3) <= cfg['farat'] < no + 32
        regs = lambda R: [str(R[i]) for i in range(len(R))]
        keep = [str(s[x_]) for x_ in ('tag', 'mask', 'spin')] + regs(s['pG0']) + regs(s['pG1']) + ['scc']
        if sync:
            n = [b(f"v_cmp_gt_u32 vcc, {s['step']}, {xs[1]}", nb=cfg.get('cnb', 60)), b(f"s_cbranch_vccnz {PACE}\n{PACE}_b:", rd=regs(xs) + [str(s['step'])], wr=['vcc_lo', 'vcc_hi'])]
            for nd in n: nd.skip = w != 2
        if spec:
            c1, c2 = spec
            b(f"v_bitop3_b32 {xs[0]}, {A[0][0]}, {A[0][2]}, {s['tag']} bitop3:0x7e")
            b(f"v_bitop3_b32 {xs[1]}, {A[1][0]}, {A[1][2]}, {s['tag']} bitop3:0x7e", nb=c1)
            b(f"v_or_b32 {xs[0]}, {xs[0]}, {xs[1]}").skip = w >= 2
            b(f"v_bitop3_b32 {xs[1]}, {A[2][0]}, {A[2][2]}, {s['tag']} bitop3:0x7e", nb=c2).skip = w >= 2
            b(f"v_bitop3_b32 {xs[0]}, {xs[0]}, {xs[1]}, {s['mask']} bitop3:0xa8\nv_cmp_ne_u32 vcc, 0, {xs[0]}")
            b(f"s_cbranch_vccnz {RT[0]}", rd=keep + [str(s[x_]) for x_ in ('step', 'sKV', 'sML', 'need', 't1', 't3', 'lead')], wr=['@chk'])
        gwrite(b, 0, tok='w1')
        if pipe: b(gcheck(1), nb=cfg['c12'][0]); b(f"s_cbranch_vccnz {RT[1]}\n{RT[1]}_b:", rd=keep + [str(GT[1])], wr=regs(A[1]) + [str(GT[1])])
        gwrite(b, 1, tok='w1', nb=spec[0] if spec else 0)
        if pipe: b("s_barrier", done=['w1'], wr=['@b1'])
        n = len(b.nodes)
        gwrite(b, 2, tok='w1c', nb=cfg['c12'][1] if pipe else spec[1] if spec else 0).svc = 22
        if pipe: b(gcheck(2)); b(f"s_cbranch_vccnz {RT[2]}\n{RT[2]}_b:", rd=keep + regs(xs), wr=regs(xs) + ['@c2'])
        for nd in b.nodes[n:]: nd.skip = w >= 2
        b(f"s_xor_b32 {s['tag']}, {s['tag']}, 1")
        if fb != 1: bar1()
        for p in (0, 1):
            for m in self.ownm:
                for t in (0, 1): mm((m, p, t), acc[m][t], A[p])
        rot = [A[2], A[0], A[1]] * 9 if pipe else ([A[2], xs] + [A[0], A[1], A[2]] * 8) if cfg['publish'] and fb != 2 else ([A[2], xs, A[0], A[1]] * 2 + [A[2], A[0], A[1]] * 6)
        QP0 = "quad_perm:[0,1,0,1] row_mask:0xf bank_mask:0xf"; QP1 = "quad_perm:[2,3,2,3] row_mask:0xf bank_mask:0xf"
        def mpass(m, part=slice(None)):
            if m not in self.ownm and not part.start:
                for i in range(0, 8, 2): b(f"v_mov_b64 {va.sub(i,2)}, 0")
            for p in self.porder[m][part]:
                R = rot.pop(0)
                b(f"ds_read_b128 {R}, {L16} offset:{frag(p)*1024}", rd=['@b1' if p < 8 else '@b1c'], tok='rc' if p >= 8 and m == 'v' else None)
                for t in (0, 1): mm((m, p, t), acc[m][t], R)
                if (m, p) == ('q', 3) and not pipe and fb == 1: log()
        def qpost():
            for t in (0, 1):
                D = acc['q'][t]
                b(f"v_add_f32 {D[0]}, {D[0]}, {D[2]}\nv_add_f32 {D[1]}, {D[1]}, {D[3]}")
                b(f"v_mul_f32 {D[0]}, {s['c']}, {D[0]}\nv_mul_f32 {D[1]}, {s['c']}, {D[1]}\nv_cvt_pk_bf16_f32 {D[0]}, {D[0]}, {D[1]}")
            b(f"ds_write2_b32 {r['tw']}, {qa[0]}, {qa[4]} offset0:0 offset1:128", tok='w2', rd=['@b1'])
            b("s_barrier", done=['w2'], rd=VO if fb == 2 else [], wr=['@b2'] + (VO if fb == 2 else []))
            if fb == 2: log(); far()
            for f in (0, 1):
                for t in (0, 1): b(f"ds_read_b64_tr_b16 {qa.sub(4*f+2*t,2)}, {r['tr']} offset:{((w&2)+f)*1024+t*512}", rd=['@b2'])
            b(f"v_mfma_f32_16x16x32_bf16 {xs}, {K[0:4]}, {qa[0:4]}, 0")
            b(f"v_mfma_f32_16x16x32_bf16 {xs}, {K[4:8]}, {qa[4:8]}, {xs}")
            b(f"v_bfe_u32 {K[0]}, {L16}, 5, 1\nv_lshl_add_u32 {K[0]}, {K[0]}, 3, {r['xb']}")
            b(f"v_xor_b32 {K[0]}, 128, {K[0]}").skip = not (w & 1)
            b(f"s_mov_b64 vcc, {s['m33']}")
            for i in range(2): b(f"v_cndmask_b32_dpp {xs[i]}, {xs[2+i]}, {xs[i]}, vcc {QP0}")
            b(f"ds_write_b64 {K[0]}, {xs[0:2]} offset:{L_X - L_CF + w*512}", tok='w3', rd=['@b2'])
            for sl in 'pr':
                for k in [k for k in self.keys if self.src[k][1:] == sl][:1]: self.tile_load(k, b)
        mpass('q')
        if fb == 1 or (fb == 3 and far_at[0] == 'q'): qpost()
        mpass('k')
        for t in (0, 1):
            D = acc['k'][t]
            b(f"v_add_f32 {D[0]}, {D[0]}, {D[2]}\nv_add_f32 {D[1]}, {D[1]}, {D[3]}\nv_cvt_pk_bf16_f32 {D[0]}, {D[0]}, {D[1]}")
        b(f"ds_write2_b32 {r['tw']}, {ka[0]}, {ka[4]} offset0:1 offset1:129", tok='w3', rd=['@b1'])
        mpass('v', slice(0, 2))
        b("s_barrier", done=['w3', 'rc'], wr=['@b3'])
        G = [qa[0:4], qa[4:8], ka[0:4], ka[4:8]]
        o = [qa[0:4], qa[4:8]]; l = ka[0:4]; ones = ka[4:8]; sm = xs; vb = va[2:4]
        for f in range(4):
            for t in (0, 1): b(f"ds_read_b64_tr_b16 {G[f].sub(2*t,2)}, {r['tr']} offset:{f*1024+t*512}", rd=['@b3'])
        for f in range(4): b(f"v_mfma_f32_16x16x32_bf16 {sm}, {G[f]}, {G[f]}, {sm if f else 0}")
        def xread(e, **kw):
            for j in (0, 1): e(f"ds_read_b128 {K.sub(4*j,4)}, {r['xr']} offset:{L_X - L_CF + j*1024}", **kw)
        def xadd(e):
            for i in range(4): e(f"v_add_f32 {K[i]}, {K[i]}, {K[4+i]}")
        def attend(e):
            tt = (K[6], K[7])
            for i in range(4): e(f"v_exp_f32 {K[i]}, {K[i]}")
            for i in range(2): e(f"v_cvt_pk_bf16_f32 {tt[i]}, {K[2*i]}, {K[2*i+1]}")
            for i in range(4): e(f"v_mov_b32_dpp {K[i]}, {tt[i&1]} {QP1 if i>>1 else QP0}")
            e(f"v_mov_b64 {ones[0:2]}, {s['one'][0:2]}\nv_mov_b64 {ones[2:4]}, {s['one'][0:2]}")
            e(f"v_mfma_f32_16x16x32_bf16 {o[0]}, {Vx[0:4]}, {K[0:4]}, 0")
            e(f"v_mfma_f32_16x16x32_bf16 {o[1]}, {Vx[4:8]}, {K[0:4]}, 0")
            e(f"v_mfma_f32_16x16x32_bf16 {l}, {ones}, {K[0:4]}, 0")
            e(f"v_mov_b64 {K[6:8]}, {s['one'][2:4]}")
            e(f"v_exp_f32_dpp {sm[0]}, {sm[2]} {QP0}\nv_exp_f32_dpp {sm[1]}, {sm[3]} {QP0}")
            e(f"v_cvt_pk_bf16_f32 {K[4]}, {sm[0]}, {sm[1]}\nv_cvt_pk_bf16_f32 {K[5]}, {sm[0]}, {sm[1]}")
            e(f"v_mfma_f32_16x16x16_bf16 {l}, {K[6:8]}, {K[4:6]}, {l}")
            e(f"v_mfma_f32_16x16x16_bf16 {o[0]}, {va[0:2]}, {K[4:6]}, {o[0]}")
            e(f"v_mfma_f32_16x16x16_bf16 {o[1]}, {va[2:4]}, {K[4:6]}, {o[1]}")
            e(f"v_rcp_f32 {l[2]}, {l[0]}")
            for i in range(4): e(f"v_cndmask_b32 {qa[i]}, {qa[4+i]}, {qa[i]}, {s['m33']}\nv_mul_f32 {qa[i]}, {qa[i]}, {l[2]}")
            for i in range(2): e(f"v_cvt_pk_bf16_f32 {qa[4+i]}, {qa[2*i]}, {qa[2*i+1]}")
        xread(b, rd=['@b3']); xadd(b)
        mpass('v', slice(2, None))
        for i in range(4): b(f"v_cvt_pk_bf16_f32 {va[i]}, {va[2*i]}, {va[2*i+1]}")
        b(f"v_bfe_u32 {A[0][0]}, {L16}, 5, 1\nv_lshl_add_u32 {A[0][0]}, {A[0][0]}, 3, {r['xb']}")
        attend(b)
        b(f"v_subrev_u32 {l[1]}, {s['lo']}, {l[0]}\nv_cmp_lt_u32 vcc, {s['rng']}, {l[1]}")
        fix = [str(x[i]) for x in (qa, ka, K, xs) for i in range(len(x))]
        b(f"s_cbranch_vccnz {RARE}\n{BACK}:", rd=fix + [str(x[i]) for x in (Vx, va[0:4]) for i in range(len(x))], wr=fix)
        b(f"ds_write_b64 {A[0][0]}, {qa[4:6]} offset:{w*512}", tok='w5', rd=['@b3'])
        for i in range(4): b(f"v_mov_b32_dpp {qa[i]}, {qa[4+(i&1)]} {QP1 if i>>1 else QP0}")
        b("s_barrier", done=['w5'], wr=['@b5'])
        for sl in 'xy':
            for k in [k for k in self.keys if self.src[k][1:] == sl][:1]: self.tile_load(k, b)
        b(f"v_lshrrev_b32 {xs[0]}, 8, {L16}\nv_bfe_u32 {xs[1]}, {L16}, 1, 7\nv_lshl_or_b32 {xs[0]}, {xs[0]}, 12, {xs[1]}")
        of = [qa[0:4], Vx[0:4], Vx[4:8], qa[4:8]]
        W = [A[1], A[2], K[0:4], K[4:8], A[0]]
        for x in (1, 2, 3): b(f"ds_read_b128 {of[x]}, {r['xb']} offset:{(w^x)*512}", rd=['@b5'])
        for u in range(5):
            for i in (0, 2): b(f"v_mov_b64 {W[u].sub(i,2)}, 0")
        solo = 'iso' in cfg or cfg.get('bench')
        if True:
            n = len(b.nodes)
            b(f"""s_add_u32 {s['sKV']}, {s['sKV']}, {KV_SEG if 'K' not in ab else '0x0'}
            s_add_u32 {s['step']}, {s['step']}, 1
            s_add_u32 {s['sML']}, {s['sML']}, {ML_STEP}
            s_add_u32 {s['need']}, {s['step']}, 2
            s_min_u32 {s['need']}, {s['need']}, {s['lim']}
            s_add_u32 {s['t1']}, {s['sKV']}, {KV_SEG if 'K' not in ab else 128}
            s_mov_b32 {s['spin']}, 0""")
            b(f"s_add_u32 {s['pKV'][0]}, {WS[0]}, {s['sKV']}\ns_addc_u32 {s['pKV'][1]}, {WS[1]}, 0")
            for j in range(2): b(f"s_mov_b64 {s['pG%d' % j]}, {s['pN%d' % j]}").skip = j == 1 and w >= 2
            b(f"s_mov_b32 {s['mask']}, {0 if solo else 1}")
            if cfg['publish']:
                for x_ in (f"s_and_b32 {s['lead']}, {s['step']}, 3", f"s_cselect_b32 {s['lead']}, {WS[2]}, {s['sFml']}"): b(x_).skip = w != 3
            for nd in b.nodes[n:]: nd.ins[0].keep = True
        for u in range(5): mm(('o', u, 0), W[u], of[0])
        for u in range(5):
            for x in (1, 2, 3): mm(('o', u, x), W[u], of[x])
            D = W[u]
            b(f"v_cvt_pk_bf16_f32 {D[0]}, {D[0]}, {D[1]}\nv_cvt_pk_bf16_f32 {D[1]}, {D[2]}, {D[3]}\nv_and_or_b32 {D[0]}, {D[0]}, -2, {s['tag']}")
            nd = b(f"global_store_dwordx2 {xs[0]}, {D[0:2]}, {s['pP'].sub(2*u,2)}")
            nd.tail = (4 - u) * cfg.get('tail', 64); nd.flag = 2; nd.lat = 200
        n0 = len(a.code)
        kw = dict(seed=cfg.get('seed', 0), lam=cfg.get('lam', 0.5), taslack=cfg.get('taslack', 330), save=cfg.get('save', True),
                  model=dict(cfg.get('model') or {}, **({'aq0': cfg['aq0']} if cfg['aq0'] else {})))
        tdm = cfg.get('tdm')
        est = b.schedule(Asm() if tdm else a, verbose=verbose and not tdm, tries=cfg.get('tries', 0) if w == 0 else 0, T0=cfg.get('T0', 6.0), order=self.order, **kw)
        self.order = b.order; self.est = est; self.blk = b
        if tdm:
            if cfg.get('orders'): kw['save'] = False
            est = b.schedule(a, verbose=verbose, tries=cfg.get('tries2', cfg.get('tries', 0) // 4), T0=cfg.get('T2', 3.0), order=cfg['orders'][w] if cfg.get('orders') else self.order, phase=w, anchors=b.bars, **kw)
            self.blks.append(b)
        if w == 0 or tdm: print("chain block estimate", est)
        def junk(fn, budget):
            n = len(a.code); fn(); a.nops(max(0, budget // 4 - sum(2 if x.kind == 'vmem' and x.mn[0] == 'b' else x.states() for x in a.code[n:])))
        def nextgather(mid=lambda: None, late=lambda: None):
            a("s_barrier")
            self.stamp(a, 3); self.st3(6); self.st3(7)
            junk(lambda: (gload(0), mid()), cfg['dg'][0])
            junk(lambda: gload(1), cfg['dg'][1] if w < 2 else 0)
            if w < 2: gload(2)
            if cfg['pf3']: a('s_barrier'); a.nops(cfg.get('d3', 0) // 4)
            self.prefill(cfg['pf3']); late(); trace()
            a(f"s_mov_b32 {s['spin']}, 0\ns_cmp_eq_u32 {s['step']}, {s['last']}\ns_cbranch_scc0 {GATHER}\ns_branch {EXIT}")
        if cfg.get('bench'):
            rest = []
            if 'cut' in cfg:
                rest = [x for x in a.code[n0:] if x.time > cfg['cut'] and (x.kind == 'label' or getattr(x, 'keep', False))]
                a.code[n0:] = [x for x in a.code[n0:] if x.time <= cfg['cut']]
            a(f"s_memtime {s['t64']}"); a.code += rest
            a(f"s_waitcnt vmcnt(0) lgkmcnt(0)\ns_sub_u32 {s['t0']}, {s['t64'][0]}, {s['wsrd'][0]}\ns_cmp_gt_u32 {s['step']}, 8\ns_cselect_b32 {s['t0']}, {s['t0']}, 0\ns_add_u32 {s['lay']}, {s['lay']}, {s['t0']}")
            self.prefill(cfg['pf1'] + cfg['pf2']); self.zero(zr); pfaddr(); a("s_waitcnt vmcnt(0) lgkmcnt(0)")
            nextgather(lambda: a(f"s_memtime {s['wsrd'][0:2]}"))
            a.code.insert(len(a.code) - 2, Ins("s_waitcnt lgkmcnt(0)"))
            a(f"{EXIT}:\ns_lshl_b32 {s['t0']}, {s['h']}, 4\nv_mov_b32 {xs[0]}, {s['lay']}\ns_add_u32 {s['t0']}, {s['t0']}, {STAMP_OFF + 4*w}\nbuffer_store_dword {xs[0]}, off, {WS}, {s['t0']}")
            a(f"{RARE}:\n{PACE}:\n{RT[0]}:\n{RT[1]}:\n{RT[2]}:\ns_endpgm")
            return
        if 'probe' in cfg:
            j = [i for i in range(n0, len(a.code)) if a.code[i].time >= cfg['probe']][0]
            ins = [Ins(f"s_memtime {s['st'].sub(4,2)}"), Ins("s_waitcnt vmcnt(0)"), Ins(f"s_memtime {s['st'].sub(6,2)}"), Ins("s_waitcnt lgkmcnt(0)")]
            for x in ins: x.time = cfg['probe']
            a.code[j:j] = ins
        if 'iso' in cfg:
            a.code[n0:] = [x for x in a.code[n0:] if x.time <= cfg['iso'] or x.kind == 'label' or getattr(x, 'keep', False)]
            self.stamp(a, 1)
            a("s_waitcnt vmcnt(0) lgkmcnt(0)")
            a(f"s_mov_b32 {s['t1']}, {s['sKV']}"); pfaddr()
            if 'F' not in ab: a(f"buffer_load_dword {r['flag']}, {r['flag']}, {WS}, 0 offen sc1")
            a(f"s_add_u32 {s['t1']}, {s['sKV']}, {KV_SEG}")
            self.prefill('abckvz'); self.zero(zr); pfaddr()
            a(f"s_waitcnt vmcnt(0) lgkmcnt(0)"); nextgather()
        self.stamp(a, 1)
        self.st3(1)
        NORED, JOIN = a.uid('nored'), a.uid('join')
        racc = A[2]; sel = xs; t0, t1, t2, t3, rs0, rs1 = (r['A'][i] for i in range(6))
        free = [qa, ka, va] + [r[sl] for sl in cfg['pf3'] + cfg['pf2'] + cfg['pf1'] if sl != 'z']
        def red_loads(k):
            for j in range(4): a(f"global_load_dwordx4 {free[2*k + (j>>1)].sub(4*(j&1),4)}, {L16}, {s['pRed']} offset:{j*1024} sc1")
        def pf2():
            if 'P' in ab:
                for sl in cfg['pf2']:
                    for j in range(2): a(f"ds_read_b128 {r[sl].sub(4*j,4)}, {r['ldsw']} offset:{j*1024}")
            else: self.prefill(cfg['pf2'])
        def redprep():
            a(f"""v_bfe_u32 {t0}, {L16}, 6, 1
            v_lshlrev_b32 {t0}, 4, {t0}
            v_mov_b32 {t1}, 0x3f80
            v_lshlrev_b32 {t0}, {t0}, {t1}
            v_bfe_i32 {t1}, {L16}, 4, 1
            v_and_b32 {sel[1]}, {t0}, {t1}
            v_and_b32 {sel[3]}, {t0}, {t1}
            v_xor_b32 {sel[0]}, {t0}, {sel[1]}
            v_xor_b32 {sel[2]}, {t0}, {sel[1]}""")
            a(self.rst(rs0, rs1)); pfaddr()
        if w == 2: a(f"s_cmp_ge_u32 {s['h']}, 16\ns_cbranch_scc1 {NORED}")
        if w < 3:
            d1, ns, gap = cfg['d1'][w], cfg['ns'][w], cfg['gap'][w]; early = d1 >= 80
            junk(redprep if early else lambda: None, d1); self.st3(2)
            for k in range(ns): junk(lambda: (red_loads(k), redprep() if k == 0 and not early else None), gap if k < ns - 1 else 0)
            self.st3(3)
            CH = [a.uid('chk') for _ in range(ns)]
            for k in range(ns):
                X, Y_ = free[2*k], free[2*k + 1]
                a(f"{CH[k]}:"); self.zero([racc])
                a(f"""v_smfmac_f32_16x16x64_bf16 {racc}, {sel}, {X}, {r['idx']}
                v_bitop3_b32 {t0}, {X[0]}, {X[2]}, {s['tag']} bitop3:0x7e
                v_bitop3_b32 {t1}, {X[4]}, {X[6]}, {s['tag']} bitop3:0x7e
                v_smfmac_f32_16x16x64_bf16 {racc}, {sel}, {Y_}, {r['idx']}
                v_bitop3_b32 {t2}, {Y_[0]}, {Y_[2]}, {s['tag']} bitop3:0x7e
                v_bitop3_b32 {t3}, {Y_[4]}, {Y_[6]}, {s['tag']} bitop3:0x7e
                v_or3_b32 {rs1}, {t0}, {t1}, {t2}
                v_bitop3_b32 {rs1}, {rs1}, {t3}, 1 bitop3:0xa8
                v_cmp_ne_u32 vcc, 0, {rs1}
                s_cbranch_vccnz {CH[k]}_f""")
                self.st3(4)
                for i in range(4): a(f"v_add_f32_dpp {racc[i]}, {racc[i]}, {racc[i]} row_ror:8 row_mask:0xf bank_mask:0xf")
                a(f"""v_cvt_pk_bf16_f32 {racc[0]}, {racc[0]}, {racc[1]}
                v_cvt_pk_bf16_f32 {racc[1]}, {racc[2]}, {racc[3]}
                v_and_or_b32 {racc[0]}, {racc[0]}, -2, {s['tag']}
                s_mov_b64 exec, 0x00ff00ff
                global_store_dwordx2 {rs0}, {racc[0:2]}, {s['pM']}
                s_mov_b64 exec, -1
                s_branch {JOIN}
                {CH[k]}_f:""")
                if cfg.get('sel'):
                    M = [s['t64'], s['mk'][0:2], s['mk'][2:4], 'vcc']
                    for j, t_ in enumerate((t0, t1, t2, t3)): a(f"v_and_b32 {t_}, 1, {t_}")
                    for j, t_ in enumerate((t0, t1, t2, t3)): a(f"v_cmp_ne_u32 {M[j]}, 0, {t_}")
                    for j in range(4): a(f"s_or_b64 exec, {M[j]}, 1\nglobal_load_dwordx4 {free[2*k + (j>>1)].sub(4*(j&1),4)}, {L16}, {s['pRed']} offset:{j*1024} sc1")
                    a("s_mov_b64 exec, -1")
                else: red_loads(k)
                if cfg['stamps']: a(f"s_add_u32 {s['rc'][0]}, {s['rc'][0]}, 1")
            a(f"s_add_u32 {s['spin']}, {s['spin']}, 1\ns_cmp_le_u32 {s['spin']}, {SPIN_MAX}\ns_cbranch_scc1 {CH[0]}\ns_branch {self.fail}")
        a(f"{NORED}:")
        own3 = w == 3 and cfg['dp3'] is not None
        if w >= 2:
            junk(lambda: (self.kvwait() if w == 3 else None, pfaddr()), cfg['dp3'] if own3 else 0)
            if own3: pf2()
            for i in (2, 3, 4): self.st3(i)
        a(f"{JOIN}:"); self.stamp(a, 2); self.st3(5)
        a.nops(cfg['dY'][w] // 4 if w < 3 else 0)
        a("s_barrier")
        junk(lambda: None if own3 else pf2(), cfg['dX'])
        nextgather(late=lambda: (self.zero(zr), self.prefill(cfg['pf1'])))
        a(f"{RT[0]}:")
        for j in range(len(own)): gload(j)
        if cfg['stamps']: a(f"s_add_u32 {s['rc'][1]}, {s['rc'][1]}, 1")
        a(f"s_add_u32 {s['spin']}, {s['spin']}, 1\ns_cmp_gt_u32 {s['spin']}, {SPIN_MAX}\ns_cbranch_scc1 {self.fail}")
        if spec:
            a("s_mov_b64 exec, 1")
            for _ in range(2 * len(cfg['pf3']) + (cfg['stamps'] == 3)): a(f"global_store_dword {L16}, {L16}, {s['pSyw']}")
            a("s_mov_b64 exec, -1"); self.zero(zr); a(f"s_branch {GATHER}")
        else:
            allcheck(); a(f"s_cbranch_vccnz {RT[0]}\ns_branch {RT[0]}_b")
        a(f"{RARE}:")
        xread(a); xadd(a)
        mx = l[3]
        a(f"""v_mov_b32_dpp {sm[2]}, {sm[2]} {QP0}
        v_mov_b32_dpp {sm[3]}, {sm[3]} {QP0}
        v_max3_f32 {mx}, {K[0]}, {K[1]}, {K[2]}
        v_max3_f32 {mx}, {mx}, {K[3]}, {sm[2]}
        v_max_f32 {mx}, {mx}, {sm[3]}
        v_max_f32_dpp {mx}, {mx}, {mx} quad_perm:[2,3,0,1] row_mask:0xf bank_mask:0xf
        v_mov_b32 {sm[0]}, {mx}
        v_permlane32_swap_b32 {mx}, {sm[0]}
        v_max_f32 {mx}, {mx}, {sm[0]}
        v_mov_b32 {sm[0]}, {mx}
        v_permlane16_swap_b32 {mx}, {sm[0]}
        v_max_f32 {mx}, {mx}, {sm[0]}""")
        for R in (K[0], K[1], K[2], K[3], sm[2], sm[3]): a(f"v_sub_f32 {R}, {R}, {mx}")
        attend(a)
        a(f"s_branch {BACK}")
        gather(EXIT)
        if cfg['publish']:
            for j in range(len(own)): a(f"ds_write_b128 {L16}, {A[j]} offset:{own[j]*1024}", tok='we')
            a.need('we'); a("s_barrier")
            if w == 3:
                publish(a)
                a(f"""s_add_u32 {s['t0']}, {s['step']}, 1
                s_waitcnt vmcnt(0)
                v_mov_b32 {xs[0]}, {s['t0']}
                s_mov_b64 exec, 1
                buffer_store_dword {xs[0]}, off, {WS}, {s['sFml']} sc1
                s_mov_b64 exec, -1""")
            a("s_barrier")
        if cfg['stamps']:
            a(f"s_lshl_b32 {s['t0']}, {s['h']}, 8\ns_add_u32 {s['t0']}, {s['t0']}, {STAMP_OFF + w*64}")
            a(f"s_memrealtime {s['t64']}\ns_memtime {s['st'].sub(2,2)}\ns_waitcnt lgkmcnt(0)\ns_sub_u32 {s['acc'][0]}, {s['t64'][0]}, {s['rt']}\ns_sub_u32 {s['acc'][1]}, {s['t64'][0]}, s3\ns_sub_u32 {s['acc'][2]}, {s['st'][2]}, {s['st'][0]}")
            for i in range(4): a(f"v_mov_b32 {qa[i]}, {s['acc'][i]}")
            a(f"s_lshl_b32 {s['t2']}, {s['lay']}, 5\ns_add_u32 {s['t0']}, {s['t0']}, {s['t2']}")
            a(f"v_mov_b32 {qa[4]}, {s['rc'][0]}\nv_mov_b32 {qa[5]}, {s['rc'][1]}")
            a(f"buffer_store_dwordx4 {qa[0:4]}, off, {WS}, {s['t0']}\nbuffer_store_dwordx2 {qa[4:6]}, off, {WS}, {s['t0']} offset:16")
            if cfg.get('dbgout') and w == 0:
                a(f"s_lshl_b32 {s['t0']}, {s['lay']}, 4\ns_cmp_eq_u32 {s['h']}, 0\ns_cselect_b32 {s['t0']}, {s['t0']}, 0x1000")
                for i in range(3): a(f"buffer_store_dword {qa[i]}, off, {self.DBG}, {s['t0']} offset:{20 + 4*i}")
                a(f"buffer_store_dword {qa[3]}, off, {self.DBG}, {s['t0']} offset:52")
        if w == 2 and cfg.get('wb', False):
            lw = a.uid('wb'); a(f"s_cmp_lg_u32 {s['h']}, 30\ns_cbranch_scc1 {lw}\nbuffer_wbl2 sc1\ns_waitcnt vmcnt(0)\n{lw}:")
        a(f"""s_add_u32 {s['lay']}, {s['lay']}, 1
        s_cmp_lt_u32 {s['lay']}, {1 if cfg.get('multi') else 2}
        s_cbranch_scc1 {LAYER}
        s_endpgm""")
        def drop(x):
            if x.kind == 'vmem':
                if 'F' in ab and hasattr(x, 'time') and str(r['flag']) in x.wr: return True
                if 'W' in ab and (str(s['sML']) in x.rd or str(s['sFml']) in x.rd): return True
                if 'V' in ab and str(s['pKV'][0]) in x.rd: return True
            return False
        a.code[nb0:] = [x for x in a.code[nb0:] if not drop(x)]
```

```python
MB = 1 << 20
WS_SIZE = 256 * MB
FLAGS = 11 * MB
F_KV = FLAGS + 0x0000
F_KVM = FLAGS + 0x2000
F_ML = FLAGS + 0x4000
F_P1B = FLAGS + 0x4800
F_X2 = FLAGS + 0x20000
F_P1A = FLAGS + 0x9000
F_P2 = FLAGS + 0xe000
F_P3 = FLAGS + 0x13000
F_O = FLAGS + 0x18000
F_FT = FLAGS + 0x7000
FT_OFF = 160 * MB
P_OFF = 0x10000
M_OFF = 0x60000
M0_OFF = 0x64000
SY_OFF = 0x68000
WS_S = 1 * MB
WS_L = 6 * MB
KV_OFF = 16 * MB
import os
KV_SEG, KV_HEAD = (16384, 65 * 16384) if os.environ.get('KVL', '0') == '1' else (512 * 1024, 16384)
KV_LAYER = 34 * MB; KVM_B = 512 * 1024
ML_OFF = 12 * MB
ML_STEP = 10240
TILE = 40960
XT_OFF = 84 * MB
XF_OFF = 93 * MB
YT_OFF = 99 * MB
BUF3 = 3 * MB
KVM_OFF = 105 * MB
OT_OFF = 122 * MB
XS_OFF = 156 * MB
XS_SEG = 5120
STAMP_OFF = 0xc000
K_X, K_WR, K_WI, K_BX, K_MEM0, K_WQ, K_WK, K_WV, K_WO, K_SEG, K_OUT, K_DBG, K_WS = [8 * i for i in range(13)]
D_CH = 36
D_ERR = 1
NCLEAR = 18
SPIN_MAX = 1 << 18
```

```python
import random, re
from asmlib import Ins, hazard, EXEC

class Node:
    def __init__(self, ins, rd=(), wr=(), done=(), lat=None, prio=0):
        self.ins = ins if isinstance(ins, list) else [ins]
        i0 = self.ins[0]
        self.rd = set(i0.rd) | set(rd); self.wr = set(i0.wr) | set(wr)
        self.done = list(done)
        self.lat = lat; self.prio = prio; self.t = None; self.not_before = 0
        self.preds = []; self.succs = []

VOP2 = ('v_add_f32', 'v_sub_f32', 'v_mul_f32', 'v_max_f32', 'v_min_f32', 'v_add_u32', 'v_sub_u32', 'v_and_b32', 'v_or_b32', 'v_xor_b32',
        'v_lshlrev_b32', 'v_lshrrev_b32', 'v_mov_b32', 'v_mov_b64', 'v_exp_f32', 'v_rcp_f32', 'v_rsq_f32', 'v_fmac_f32', 'v_cndmask_b32',
        'v_permlane32_swap_b32', 'v_permlane16_swap_b32', 'v_dot2c_f32_bf16', 'v_subrev_f32', 'v_swap_b32', 'v_subrev_u32', 'v_sin_f32', 'v_cos_f32', 'v_mul_u32_u24')
def isize(i):
    if i.kind in ('mfma', 'ds', 'vmem', 'smem'): return 8
    if i.kind in ('wait', 'nop', 'branch'): return 4
    lit = 0
    for o in i.ops:
        if re.match(r'^-?(0x[0-9a-f]+|\d+)$', o):
            v = int(o, 0)
            if v > 64 or v < -16 or o == '0x0': lit = 4
    if i.kind == 'valu':
        if i.mn in VOP2 or i.mn.startswith('v_cmp'):
            return 8 if any(o.startswith('-v') for o in i.ops) or (i.mn == 'v_cndmask_b32' and i.ops[-1] != 'vcc') else 4 + lit
        return 8
    return 4 + lit
WR_BLK = {'ds_write_b128': 20, 'ds_write_b64': 12, 'ds_write2_b32': 12, 'ds_write_b32': 8}
WR_SVC = {'ds_write_b128': 44, 'ds_write_b64': 24, 'ds_write2_b32': 24, 'ds_write_b32': 12}
def vm_service(i):
    return 64 if ('x4' in i.mn or 'x2' in i.mn) else 32

P = dict(ds_lat=48, dsw_lat=56, vm_lat=220, bar=16, gstep=8, bstep=8, wcol=0, wds=0)
class Block:
    def __init__(self):
        self.nodes = []
    def __call__(self, text, rd=(), wr=(), done=(), lat=None, prio=0, tok=None, nb=0):
        lines = [l.strip() for l in text.split('\n') if l.strip()]
        out = None
        k = 0
        while k < len(lines):
            grp = [Ins(lines[k], tok=tok)]
            while k + 1 < len(lines) and lines[k + 1].endswith(':'):
                k += 1; grp.append(Ins(lines[k]))
            out = Node(grp, rd, wr, done, lat, prio); out.not_before = nb
            self.nodes.append(out); k += 1
        return out

    def deps(self):
        if getattr(self, '_deps', False): return
        self._deps = True
        nodes = self.nodes
        lastw = {}; readers = {}; tokop = {}
        for k, n in enumerate(nodes): n.k = k
        for n in nodes:
            i = n.ins[0]
            if i.kind in ('salu',) and not i.mn.startswith(('s_mov', 's_barrier', 's_nop', 's_cselect', 's_setprio', 's_sleep')): n.wr.add('scc')
            if i.mn.startswith(('s_cselect', 's_addc', 's_cbranch_scc')): n.rd.add('scc')
            if i.kind in ('ds', 'vmem'): n.rd |= EXEC
            if i.kind == 'vmem' and not getattr(n, 'noorder', False): n.rd.add('@vmorder'); n.wr.add('@vmorder')
            if i.mn == 's_barrier' or i.kind == 'branch': n.rd.add('@ctl'); n.wr.add('@ctl')
            dep = {}
            def add(p, kind):
                if p is n: return
                dep.setdefault(p, set()).add(kind)
            for r in n.rd:
                if r in lastw: add(lastw[r], 'ord' if r[0] == '@' else 'raw')
            for r in n.wr:
                if r in lastw: add(lastw[r], 'ord' if r[0] == '@' else 'waw')
                for p in readers.get(r, []): add(p, 'ord')
            for t in n.done:
                for p in tokop.get(t, []): add(p, 'raw')
            for p, kinds in sorted(dep.items(), key=lambda x: x[0].k):
                pi = p.ins[0]
                mem = pi.kind in ('ds', 'vmem') and ('raw' in kinds or ('waw' in kinds and i.kind != pi.kind))
                n.preds.append((p, mem, 4 * (hazard(pi, i) + 1))); p.succs.append(n)
            for r in n.rd: readers.setdefault(r, []).append(n)
            for r in n.wr: lastw[r] = n; readers[r] = []
            for t in n.done: tokop[t] = []
            if i.tok: tokop.setdefault(i.tok, []).append(n)
            n.size = isize(i)
        def memlat(p):
            if p.lat: return p.lat
            return 72 if p.ins[0].kind == 'ds' else 340
        for n in reversed(nodes):
            h = getattr(n, 'tail', 0)
            for s in n.succs:
                for p, mem, d in s.preds:
                    if p is n:
                        dd = memlat(n) if mem else d
                        if n.ins[0].kind == 'mfma' and s.ins[0].kind == 'mfma': dd = max(dd, 4 * n.ins[0].passes)
                        if n.ins[0].kind == 'valu' and s.ins[0].kind in ('ds', 'vmem'): dd = max(dd, 12)
                        h = max(h, dd + s.h)
            n.h = h

    def run(self, noise):
        nodes = self.nodes
        for n in nodes: n.t = None; n.np = len(n.preds); n.p = n.h + n.prio + noise.get(n, 0)
        t = 0; out = []; avail = [n for n in nodes if n.np == 0]; nleft = len(nodes)
        free = {'valu': 0, 'mfma': 0, 'mem': 0}; lds_q = 0; ta_q = 0; wr_q = 0; fb = 32.0
        waited = {'ds': -1, 'vmem': -1}; seq = {'ds': 0, 'vmem': 0}; score = 0
        def effect(i, t):
            v, m, e = free['valu'], free['mfma'], free['mem']; step = 4
            if i.kind == 'valu':
                step = 8 if (i.trans or 'permlane' in i.mn) else 4
                e = max(e, t + 8 + step)
            elif i.kind == 'mfma':
                m = t + 4 * i.passes; v = t + (12 if 'smfmac' in i.mn else 8); e = max(e, t + 8)
            elif i.kind == 'ds' and not i.wr: step = WR_BLK[i.mn] + max(0, wr_q - t - 24) // 4 * 4
            elif i.kind == 'vmem':
                step = 8
                if 'store' in i.mn:
                    v = max(v, t + (20 if 'x4' in i.mn else 12)); m = max(m, v); e = max(e, v)
            elif i.mn == 's_barrier': step = 16
            elif i.kind == 'branch': step = 8
            elif i.kind == 'nop': step = 4 * i.n
            return step, v, m, e
        cls = lambda i: 'mem' if i.kind in ('ds', 'vmem') else i.kind
        while nleft:
            opts = []
            for n in avail:
                i = n.ins[0]
                e = n.not_before; needw = []
                for p, mem, d in n.preds:
                    if not mem: e = max(e, p.t + d)
                    elif p.seq > waited[p.ins[0].kind]: needw.append(p)
                c = cls(i); ew = None
                if needw:
                    ew = max(p.c for p in needw); e = max(e, max(ew, t) + 4)
                opts.append((n.p, e, n, needw, c, ew))
            opts.sort(key=lambda x: -x[0])
            pick = None
            for k, (p, e, n, needw, c, ew) in enumerate(opts):
                if needw:
                    if ew > t: continue
                    step, v, m, me = 4, free['valu'], free['mfma'], free['mem']
                else:
                    if max(e, free.get(c, 0)) > t or fb < n.size: continue
                    step, v, m, me = effect(n.ins[0], t)
                nf = {'valu': v, 'mfma': m, 'mem': me}; ok = True
                for (p2, e2, n2, nw2, c2, ew2) in opts[:k]:
                    e0 = max(e2, free.get(c2, 0), t + 4)
                    e1 = max(e2, nf.get(c2, 0), t + step + (4 if nw2 else 0))
                    if e1 - e0 > 0 and p2 - p > self.slack * (e0 - t) / (e1 - e0): ok = False; break
                if ok: pick = (n, needw, step, nf); break
            if pick is None:
                out.append((t, None, None)); t += 4; fb = min(32.0, fb + 6.6); continue
            n, needw, step, nf = pick
            if needw:
                for p in needw:
                    k = p.ins[0].kind; waited[k] = max(waited[k], p.seq)
                out.append((t, None, needw)); t += 4; fb = min(32.0, fb + 2.6); continue
            i = n.ins[0]; n.t = t; avail.remove(n); nleft -= 1
            for s in n.succs:
                s.np -= 1
                if s.np == 0: avail.append(s)
            out.append((t, n, None)); free = nf
            if i.kind == 'ds':
                n.seq = seq['ds']; seq['ds'] += 1
                if i.wr: lds_q = max(lds_q, t) + (16 if 'b128' in i.mn else 8); n.c = lds_q + 44
                else:
                    wr_q = max(wr_q, t) + WR_SVC[i.mn]; lds_q = max(lds_q + WR_SVC[i.mn] // 2, wr_q); n.c = lds_q + 40
            elif i.kind == 'vmem':
                n.seq = seq['vmem']; seq['vmem'] += 1
                ta_q = max(ta_q, t + (n.lat or 210)) + vm_service(i); n.c = ta_q
            score = max(score, t + getattr(n, 'tail', 0))
            fb = min(32.0, fb - n.size + 1.65 * step); t += step
        self.span = max(score, t)
        mf = [n.t for n in nodes if n.ins[0].kind == 'mfma' or n.ins[0].mn == 's_barrier']
        return self.span + 0.6 * sum(mf) / max(1, len(mf)), out

    def schedule(self, asm, verbose=False, tries=0, seed=0, slack=30, T0=4.0, lam=0.4, taslack=100000, save=True, order=None, model=None, phase=None, anchors=None):
        import hashlib, json, os, ctypes as ct
        here = os.path.dirname(os.path.abspath(__file__))
        P = dict(globals()['P']); P.update(model or {})
        self.deps(); self.slack = slack
        nodes = self.nodes; idx = {n: i for i, n in enumerate(nodes)}
        rec = []; preds = []
        K = dict(valu=0, mfma=1, ds=2, vmem=3)
        for n in nodes:
            i = n.ins[0]; k = K.get(i.kind, 4); step = 4; vb = mb = svc = lat = wr = 0
            if i.kind == 'valu': step = 8 if (i.trans or 'permlane' in i.mn) else 4
            elif i.kind == 'mfma': mb = 4 * i.passes; vb = 12 if 'smfmac' in i.mn else 8
            elif i.kind == 'ds':
                if i.wr: svc = 16 if 'b128' in i.mn else 8; lat = P['ds_lat']
                else: wr = 1; step = WR_BLK[i.mn] + P['wcol'] * (WR_BLK[i.mn] - 4) // 100 // 4 * 4; mb = P['wds'] * (WR_BLK[i.mn] - 4) // 16; svc = (getattr(n, 'svc', None) or WR_SVC[i.mn]) * P.get('wsvc', 100) // 100; lat = P['dsw_lat']
            elif i.kind == 'vmem':
                mb = getattr(n, 'units', 1); step = P['gstep'] if i.mn[0] == 'g' else P['bstep']; svc = getattr(n, 'svc', None) or vm_service(i); lat = n.lat or P['vm_lat']
                if 'store' in i.mn: wr = 1; vb = (20 if 'x4' in i.mn else 12) + P.get('sb', 0)
            elif i.mn == 's_barrier': step = P['bar']
            elif i.kind == 'branch': step = 8
            elif i.kind == 'nop': step = 4 * i.n
            extra = sum(1 for x in n.ins[1:] if x.kind != 'label')
            rec.append([k, step + 4 * extra, n.size + 4 * extra, vb, mb, svc, lat, wr, getattr(n, 'tail', 0), n.not_before, 0, extra, getattr(n, 'flag', 0) | (4 if getattr(n, 'pre', None) else 0) | (8 if i.mn.startswith(('v_dot', 'v_pk_')) else 0)])
        if phase is not None:
            bars = [k for k, n in enumerate(nodes) if n.ins[0].mn == 's_barrier']
            for k, n in enumerate(nodes):
                if getattr(n, 'skip', False): rec[k][12] |= 16
            for k, t_ in zip(bars, anchors[0]): rec[k][9] = t_; rec[k][8] = anchors[1] - t_
        wnode = {}
        for n in nodes:
            pl = []
            for p, mem, d in n.preds:
                pl.append((idx[p], d // 4 - 1))
                if mem:
                    if p not in wnode:
                        wnode[p] = len(rec); rec.append([5, 4, 4, 0, 0, 0, 0, 0, 0, 0, idx[p], 0, 0])
                    pl.append((wnode[p], 0))
            preds.append(pl)
        for p in wnode: preds.append([(idx[p], 0)])
        N = len(rec); succs = [[] for _ in range(N)]
        for i, pl in enumerate(preds):
            for j, _ in pl: succs[j].append(i)
        key = hashlib.md5((str(rec) + str(preds) + str(taslack) + ''.join(str(P[k]) for k in ('tag', 'qd', 'qs', 'fr', 'aq0', 'fm') if k in P) + ('' if phase is None else 'ph%d' % phase)).encode()).hexdigest()
        cf = os.environ.get('SCHED_CACHE') or os.path.join(here, 'sched_cache.json')
        cache = json.load(open(cf)) if os.path.exists(cf) else {}
        if phase is not None and key in cache and not tries and save: order = cache[key]
        elif order is not None: pass
        elif key in cache: order = cache[key]
        else:
            _, out = self.run({})
            order = []; placed = set()
            for tt, n, needw in out:
                ws = [wnode[p] for p in needw] if needw else [j for j, _ in preds[idx[n]] if j >= len(nodes)] if n else []
                for j in ws:
                    if j not in placed: placed.add(j); order.append(j)
                if n: order.append(idx[n])
        lib = ct.CDLL(os.path.join(here, 'sa.so'))
        lib.setp(P.get('qd', 192), P.get('qs', 192), ct.c_double(P.get('fr', 1.65)), P.get('aq0', 0))
        lib.setq(P.get('md', 32), P.get('mv', 100), ct.c_double(P.get('pw', 0)), ct.c_double(P.get('pd', 0)))
        setph = lambda: lib.setph(-1 if phase is None else phase, ct.c_double(P.get('pp', 12)), P.get('pm', 4))
        setph()
        lib.setf(P.get('fm', 600))
        arr = lambda l: (ct.c_int * max(1, len(l)))(*l)
        po = [0]; so = [0]
        for pl in preds: po.append(po[-1] + len(pl))
        for sl in succs: so.append(so[-1] + len(sl))
        co = arr(order); tv = arr([0] * N); el = arr([0] * N)
        fixed = (N, arr([x for r in rec for x in r]), arr(po), arr([j for pl in preds for j, _ in pl]), arr([h for pl in preds for _, h in pl]), arr(so), arr([j for sl in succs for j in sl]))
        def mutate(order, lo, hi, iters, seed, T):
            o = arr(order); lib.setw(lo, hi, 1); setph()
            sp = lib.anneal(*fixed, o, ct.c_long(iters), seed, ct.c_double(T), ct.c_double(lam), arr([0] * N), arr([0] * N), taslack)
            lib.setw(0, 1 << 20, 0); return list(o), sp
        self.mutate = mutate; self.key = key
        span = lib.anneal(*fixed, co, ct.c_long(tries), seed, ct.c_double(T0), ct.c_double(lam), tv, el, taslack)
        order = self.order = list(co)
        self.bars = ([tv[k] for k, n in enumerate(nodes) if n.ins[0].mn == 's_barrier'], span)
        if tries and save:
            cache = json.load(open(cf)) if os.path.exists(cf) else {}
            cache[key] = order; json.dump(cache, open(cf, 'w'))
        t = 0
        for j in order:
            if j >= len(nodes) and el[j]: continue
            if getattr(nodes[j if j < len(nodes) else rec[j][10]], 'skip', False):
                if phase is None: t = tv[j] + rec[j][1]
                continue
            xs = []
            pre = getattr(nodes[j], 'pre', []) if j < len(nodes) else []
            for _ in range((tv[j] - t) // 4 - len(pre)): xs.append(Ins('.idle'))
            if j >= len(nodes):
                p = nodes[rec[j][10]].ins[0]
                w = Ins('.need', need=[] if p.wr else [p.tok]); w.rd = set(p.wr); xs.append(w)
            else:
                n = nodes[j]
                if n.done: n.ins[0].need = list(n.done)
                xs += pre + n.ins
            t = tv[j] + rec[j][1]
            for x in xs:
                x.time = tv[j]; asm.code.append(x)
                if verbose: print(f"{tv[j]:5d}  {x.text} {sorted(x.rd)[:1] if x.text == '.need' else ''}{x.need if x.text == '.need' else ''}")
        return span
```

```python
import math, struct, copy
from asmlib import *
from sched import Block
from layout import *
def f32(x): return hex(struct.unpack('<I', struct.pack('<f', x))[0])
CSCALE = 128 ** -0.5 * math.log2(math.e)
TO = 2048; TB2 = 81920; L_ST = 0; L_AB = 1024; L_XS = 131072; L_FILT = 147456
MF32 = "v_mfma_f32_32x32x16_bf16"; MF16 = "v_mfma_f32_16x16x32_bf16"

class Workers:
    def __init__(self, a, S, g, cfg):
        self.a = a; self.S = S; self.g = g; self.cfg = cfg; self.WS = g['WS']; self.fail = 'L_fail'
        self.s = {n: S(1) for n in "j lay spin t0 t1 t2 t3 pa pv ones m0b src dst cnt need seg w10 h par sl xsb xsrc w1k stp".split()}
        self.s['w'] = g['w']; self.s['srd'] = S(4); self.s['xsrd'] = S(4); self.s['t64'] = S(2)
        self.V = Pool('v', 0, 256)
        self.r = {n: self.V(1) for n in "L16 rd rs t0 t1".split()}
        self.W = Reg('a', 0, 256)
    def sched(self, b, tries=None):
        return b.schedule(self.a, tries=self.cfg.get('wtries', 0), T0=4.0, lam=0.3, verbose=self.cfg.get('wv'))
    def mark(self, i):
        if not self.cfg.get('marks'): return
        a, s, r = self.a, self.s, self.r
        a(f"""s_memrealtime {s['t64']}
        s_lshl_b32 {s['t3']}, {s['j']}, 7
        s_add_u32 {s['t3']}, {s['t3']}, {15*MB}
        s_lshl_b32 {s['spin']}, {s['lay']}, 6
        s_add_u32 {s['t3']}, {s['t3']}, {s['spin']}
        s_waitcnt lgkmcnt(0)
        v_mov_b32 {r['t0']}, {s['t64'][0]}
        buffer_store_dword {r['t0']}, off, {self.WS}, {s['t3']} offset:{4*i}""")

    def srd(self, R, karg, size):
        self.a(f"s_load_dwordx2 {R[0:2]}, s[0:1], {karg}\ns_mov_b32 {R[2]}, {size}\ns_mov_b32 {R[3]}, 0x20000\ns_waitcnt lgkmcnt(0)")
    def poll(self, soff, n, need, T, wg=True, first=0, nap=None):
        a, s, r = self.a, self.s, self.r
        lp, done = a.uid('poll'), a.uid('polld')
        if wg: a(f"s_cmp_lg_u32 {s['w']}, 0\ns_cbranch_scc1 {done}")
        nl = (n + 63) // 64; A0, A1 = r['t0'], T[4]
        a(f"v_lshlrev_b32 {A0}, 3, {r['L16']}\nv_min_u32 {A1}, {((n-1) % 64)*128}, {A0}")
        if isinstance(soff, int): a(f"s_mov_b32 {s['t3']}, {soff}"); soff = s['t3']
        a(f"s_mov_b32 {s['spin']}, 0\n{lp}:")
        for j in range(nl):
            if j: a(f"s_add_u32 {s['t2']}, {soff}, {8192*j}")
            a(f"buffer_load_dword {T[j]}, {A0 if j < nl - 1 else A1}, {self.WS}, {s['t2'] if j else soff} offen sc1")
        a(f"s_add_u32 {s['spin']}, {s['spin']}, 1\ns_cmp_gt_u32 {s['spin']}, {SPIN_MAX}\ns_cbranch_scc1 {self.fail}")
        for j in range(1, nl): a(f"v_min_u32 {T[0]}, {T[0]}, {T[j]}")
        a(f"v_cmp_gt_u32 vcc, {need}, {T[0]}\ns_cbranch_vccz {done}\ns_sleep {nap or self.cfg.get('nap', 2)}\ns_branch {lp}\n{done}:")
        if wg: a("s_barrier")
    def flag(self, soff, val, e=None):
        r = self.r
        if e is None:
            self.a(f"v_mov_b32 {r['t0']}, {val}\ns_mov_b64 exec, 1\nbuffer_store_dword {r['t0']}, off, {self.WS}, {soff} sc1\ns_mov_b64 exec, -1")
        else:
            e(f"v_mov_b32 {r['t0']}, {val}")
            nd = e(f"buffer_store_dword {r['t0']}, off, {self.WS}, {soff} sc1", rd=['@mid'])
            nd.pre = [Ins("s_mov_b64 exec, 1")]; nd.ins.append(Ins("s_mov_b64 exec, -1")); nd.want = self.cfg.get('mid', 1000) + 50; nd.noorder = True
    def pend(self, soff, val):
        s = self.s
        self.a(f"s_cmp_eq_u32 {s['w']}, 0\ns_cselect_b32 {s['pa']}, {soff}, {self.WS[2]}\ns_mov_b32 {s['pv']}, {val}")
    def flush(self):
        s = self.s
        self.a("s_waitcnt vmcnt(0)\ns_barrier"); self.flag(s['pa'], s['pv']); self.a(f"s_mov_b32 {s['pa']}, {self.WS[2]}")
    def dma(self, e, voff, srd, soff, step, ldsbase, n=10, inblock=False, lstep=1024, stats=False):
        s = self.s; ops = []
        for j in range(n):
            adv = f"s_add_u32 {s['t2']}, {soff}, {j*step}" if isinstance(step, int) else f"s_add_u32 {s['t2']}, {s['t2']}, {step}" if j else f"s_mov_b32 {s['t2']}, {soff}"
            ops.append(([f"s_add_u32 m0, {ldsbase}, {TO + j*lstep}", adv], voff))
        if stats:
            for o in (s['w1k'], 4096): ops.append(([f"s_add_u32 m0, {s['xsb']}, {o}", f"s_add_u32 {s['t2']}, {s['xsrc']}, {o}"], self.r['L16']))
        for j, (pre, vo) in enumerate(ops):
            ld = f"buffer_load_dwordx4 {vo}, {srd}, {s['t2']} offen sc1 lds"
            if inblock:
                nd = e(ld, tok='dma'); nd.pre = [Ins(x) for x in pre]; nd.lat = 800; nd.want = 100 + 72 * j + (300 if j >= 6 and not stats else 0)
            else:
                for x in pre: e(x)
                e(ld, tok='dma')
    def load_weights(self, karg, nfrag, rowstride, base, vtype):
        a, s, r = self.a, self.s, self.r
        T = self.V(4); ga, la, x, y = T[0], T[1], T[2], T[3]; L = r['L16']
        self.srd(s['srd'], karg, 640 * 4096 * 2)
        a(f"""v_lshrrev_b32 {x}, 6, {L}
        v_mul_u32_u24 {x}, {rowstride}, {x}
        v_and_b32 {y}, 48, {L}
        v_add_u32 {ga}, {x}, {y}
        v_bfe_u32 {x}, {L}, 6, 2
        v_lshrrev_b32 {y}, 9, {L}
        v_lshl_add_u32 {x}, {y}, 3, {x}
        v_lshlrev_b32 {la}, 6, {x}""")
        if vtype: a(f"v_and_b32 {x}, 48, {L}\nv_add_u32 {la}, {la}, {x}\nv_bfe_u32 {x}, {L}, 8, 1\nv_lshl_add_u32 {la}, {x}, 3, {la}")
        else: a(f"v_and_b32 {x}, 16, {L}\nv_add_u32 {la}, {la}, {x}\nv_bfe_u32 {x}, {L}, 5, 1\nv_lshl_add_u32 {la}, {x}, 3, {la}\nv_bfe_u32 {x}, {L}, 8, 1\nv_lshl_add_u32 {la}, {x}, 5, {la}")
        a(f"s_mul_i32 {s['t0']}, {s['w']}, 36864\nv_add_u32 {la}, {s['t0']}, {la}\ns_barrier")
        nch = nfrag // 4
        def issue(c):
            for j in range(4):
                a(f"s_add_u32 m0, {s['t0']}, {(c % 9)*4096 + j*1024}\ns_add_u32 {s['t1']}, {base}, {(4*c + j)*16*rowstride}")
                a(f"buffer_load_dwordx4 {ga}, {s['srd']}, {s['t1']} offen lds", tok=f"wc{c}")
        for c in range(min(9, nch)): issue(c)
        for c in range(nch):
            a.need(f"wc{c}")
            for j in range(4):
                for q in range(2): a(f"ds_read_b64_tr_b16 {self.W.sub(16*c + 4*j + 2*q, 2)}, {la} offset:{(c % 9)*4096 + j*1024 + q*256}", tok='wt')
            if c + 9 < nch: a.need('wt'); issue(c + 9)
        a("s_waitcnt lgkmcnt(0)\ns_barrier")
        self.V.free(T)
    def colsum(self, W, cs, vtype, hook=None):
        a = self.a; T = self.V(20, 4); one = T[0:4]; acc = T[4:20]
        for i in range(4): a(f"v_mov_b32 {one[i]}, {self.s['ones']}")
        for f in range(40):
            x, y = (one, W.sub(4*f, 4)) if vtype else (W.sub(4*f, 4), one)
            a(f"{MF32} {acc}, {x}, {y}, {acc if f else 0}")
            if hook: hook(f)
        for i in range(len(cs)): a(f"v_mov_b32 {cs[i]}, {acc[i]}")
        self.V.free(T)
    def gen_dft(self, W, inverse, hook=None):
        a, s, r = self.a, self.s, self.r; L = r['L16']
        T = self.V(24, 2); P = [T[0:8], T[8:16]]; co, c1 = T[16:18], T[18:20]; v, ph, x, y = (T[20 + i] for i in range(4)); u0 = T[17]
        a(f"s_lshl_b32 {s['t0']}, {s['sl']}, 7\ns_lshl_b32 {s['t1']}, {s['w']}, 5\ns_add_u32 {s['t0']}, {s['t0']}, {s['t1']}\ns_mov_b32 {s['t1']}, {f32(1/640)}")
        a(f"v_bfe_u32 {x}, {L}, 4, 5\nv_lshrrev_b32 {u0}, 9, {L}")
        if inverse:
            a(f"""v_and_b32 {v}, 19, {x}
            v_bfe_u32 {y}, {x}, 2, 1
            v_lshl_add_u32 {v}, {y}, 3, {v}
            v_bfe_u32 {y}, {x}, 3, 1
            v_lshl_add_u32 {v}, {y}, 2, {v}
            v_add_u32 {v}, {s['t0']}, {v}
            v_lshlrev_b32 {u0}, 2, {u0}
            v_mov_b32 {ph}, 0""")
            du = 8
        else:
            a(f"""v_add_u32 {x}, {s['t0']}, {x}
            v_and_b32 {ph}, 1, {x}
            v_mul_u32_u24 {ph}, 160, {ph}
            v_lshrrev_b32 {v}, 1, {x}
            v_add_u32 {v}, 1, {v}
            v_lshlrev_b32 {u0}, 3, {u0}""")
            du = 16
        a(f"v_mad_u32_u24 {ph}, {u0}, {v}, {ph}")
        def angle(dst, mul, base):
            if mul > 64: a(f"s_mov_b32 {s['t2']}, {mul}"); mul = s['t2']
            a(f"""v_mad_u32_u24 {dst}, {v}, {mul}, {base}
            v_cvt_f32_u32 {dst}, {dst}
            v_mul_f32 {x}, {s['t1']}, {dst}
            v_rndne_f32 {x}, {x}
            v_fmac_f32 {dst}, {f32(-640.0)}, {x}
            v_mul_f32 {dst}, {s['t1']}, {dst}""")
        for c_, m_ in ((co[0], du), (c1[0], 1)):
            angle(c_, m_, 0); a(f"v_cos_f32 {c_}, {c_}\nv_add_f32 {c_}, {c_}, {c_}")
        PK = "op_sel_hi:[0,1,1] neg_lo:[0,0,1] neg_hi:[0,0,1]"
        for f in range(40):
            cur, prv = P[f & 1], P[1 - (f & 1)]
            if f % 20 >= 2:
                for i in range(4): a(f"v_pk_fma_f32 {cur.sub(2*i,2)}, {co}, {prv.sub(2*i,2)}, {cur.sub(2*i,2)} {PK}")
            elif inverse:
                for i in range(2):
                    angle(cur[2*i], du*f + 1 + i, ph); a(f"v_sin_f32 {cur[2*i+1]}, -{cur[2*i]}\nv_cos_f32 {cur[2*i]}, {cur[2*i]}")
                for i in (2, 3): a(f"v_pk_fma_f32 {cur.sub(2*i,2)}, {c1}, {cur.sub(2*i-2,2)}, {cur.sub(2*i-4,2)} {PK}")
            else:
                for el in (3, 4):
                    angle(cur[el], du*f + el, ph); a(f"v_cos_f32 {cur[el]}, {cur[el]}")
                for el in (5, 6, 7): a(f"v_fma_f32 {cur[el]}, {c1[0]}, {cur[el-1]}, -{cur[el-2]}\nv_fma_f32 {cur[7-el]}, {c1[0]}, {cur[8-el]}, -{cur[9-el]}")
            if inverse and f == 39:
                a(f"s_mov_b32 exec_lo, 0\nv_mul_f32 {cur[6]}, 0.5, {cur[6]}\ns_mov_b32 exec_lo, -1")
            for i in range(4): a(f"v_cvt_pk_bf16_f32 {W[4*f + i]}, {cur[2*i]}, {cur[2*i+1]}")
            if hook: hook(f)
        self.V.free(T)

    def unit(self, W, vtype, ln, cs, out, rd, nxt=None, scale=None, tr=False, pre=None, post=None, raw=None, defer=False, after=None):
        a, s, r, V = self.a, self.s, self.r, self.V; L = r['L16']
        b = Block(); acc = V(16, 4); NB = 4; xf = V(4 * NB, 4); tmp = []
        if pre: pre(b)
        if nxt: nxt(b)
        if ln:
            st = V(8, 4); ab = V(32 if vtype else 16, 4); sf = ab[0:16]; tmp = [st, ab]
            mean, var = st[0], st[4]
        if ln == 'given':
            b(f"s_xor_b32 {s['t0']}, {s['xsb']}, 8192\nv_lshrrev_b32 {r['rs']}, 2, {L}\nv_add_u32 {r['rs']}, {s['t0']}, {r['rs']}")
            P_ = [st.sub(0, 2), st.sub(2, 2)] + [ab.sub(2*i, 2) for i in range(8)]
            for j in range(10): b(f"ds_read2st64_b32 {P_[j]}, {r['rs']} offset0:{2*j} offset1:{2*j+1}")
            for j in range(1, 10): b(f"v_add_f32 {st[0]}, {st[0]}, {P_[j][0]}\nv_add_f32 {st[1]}, {st[1]}, {P_[j][1]}")
            b(f"v_add_f32 {mean}, {st[0]}, {st[1]}\nv_mov_b32 {var}, {mean}\nv_permlane32_swap_b32 {mean}, {var}")
        elif ln:
            s1, s2 = st[0], st[1]
            if raw: b(f"s_lshl_b32 {s['t0']}, {s['w']}, 5\nv_xor_b32 {r['rs']}, {s['t0']}, {raw[0]}")
            else: b(f"v_add_u32 {r['rs']}, {s['w10']}, {rd}")
            b(f"v_mov_b64 {st[0:2]}, 0")
            for j in range(10):
                R = sf.sub(4 * (j & 3), 4)
                b(f"ds_read_b128 {R}, {r['rs']} offset:{TO + j*(4096 if raw else 1024)}", prio=3000)
                for i in range(4): b(f"v_dot2c_f32_bf16 {s1}, {s['ones']}, {R[i]}\nv_dot2c_f32_bf16 {s2}, {R[i]}, {R[i]}", prio=3000, wr=['@dot'])
            b(f"v_permlane32_swap_b32 {s1}, {s2}\nv_add_f32 {s1}, {s1}, {s2}\nv_lshl_add_u32 {s2}, {s['w']}, 2, {L}")
            b(f"ds_write_b32 {s2}, {s1} offset:{L_ST}", tok='stw')
            b("s_barrier", done=['stw'], wr=['@st'])
            b(f"v_and_b32 {r['rs']}, 0x1ff, {L}")
            b(f"ds_read_b128 {st[0:4]}, {r['rs']} offset:{L_ST}\nds_read_b128 {st[4:8]}, {r['rs']} offset:{L_ST + 512}", rd=['@st'])
            b(f"""v_add_f32 {st[0]}, {st[0]}, {st[1]}
            v_add_f32 {st[2]}, {st[2]}, {st[3]}
            v_add_f32 {st[4]}, {st[4]}, {st[5]}
            v_add_f32 {st[6]}, {st[6]}, {st[7]}
            v_add_f32 {st[0]}, {st[0]}, {st[2]}
            v_add_f32 {st[4]}, {st[4]}, {st[6]}""")
        if defer:
            b("s_barrier", done=['st'], wr=['@mid'], nb=self.cfg.get('mid', 1000))
            self.flag(s['pa'], s['pv'], b)
        if ln:
            b(f"""
            v_mul_f32 {mean}, {f32(1/640)}, {mean}
            v_mul_f32 {var}, {f32(1/640)}, {var}
            v_fma_f32 {var}, -{mean}, {mean}, {var}
            v_max_f32 {var}, 0, {var}
            v_add_f32 {var}, {f32(1e-5)}, {var}
            v_rsq_f32 {var}, {var}""")
            if scale: b(f"v_mul_f32 {var}, {f32(scale)}, {var}")
            b(f"v_mul_f32 {mean}, {var}, {mean}")
            if vtype:
                b(f"v_permlane32_swap_b32 {var}, {mean}")
                b(f"v_lshrrev_b32 {st[1]}, 2, {L}\nv_lshl_add_u32 {st[1]}, {s['w']}, 8, {st[1]}")
                b(f"ds_write_b32 {st[1]}, {var} offset:{L_AB}", wr=['@ab'])
                b(f"v_bfe_u32 {st[2]}, {L}, 5, 5\nv_and_b32 {st[2]}, 16, {st[2]}\nv_lshl_add_u32 {st[2]}, {s['w']}, 8, {st[2]}")
                for j in range(8): b(f"ds_read_b128 {ab.sub(4*j,4)}, {st[2]} offset:{L_AB + 32*j}", rd=['@ab'])
                for i in range(16): b(f"v_mul_f32 {ab[16+i]}, {ab[16+i]}, {cs[0]}")
            else:
                for i in range(16): b(f"v_mul_f32 {ab[i]}, {mean}, {cs[i]}")
        for f in range(40):
            R = xf.sub(4 * (f % NB), 4)
            if tr:
                for q in range(2): b(f"ds_read_b64_tr_b16 {R.sub(2*q,2)}, {rd} offset:{TO + f*1024 + q*256}")
            elif raw: b(f"ds_read_b128 {R}, {raw[f & 3]} offset:{TO + (f >> 2)*4096}")
            else: b(f"ds_read_b128 {R}, {rd} offset:{TO + f*1024}")
            x, y = (R, W.sub(4*f, 4)) if vtype else (W.sub(4*f, 4), R)
            b(f"{MF32} {acc}, {x}, {y}, {acc if f else 0}", rd=['@dot'])
        if ln:
            NEG = "neg_lo:[0,0,1] neg_hi:[0,0,1]"
            for i in range(0, 16, 2):
                D = acc.sub(i, 2)
                b(f"v_pk_fma_f32 {D}, {D}, {ab.sub(i,2)}, {ab.sub(16+i,2)} {NEG}" if vtype else f"v_pk_fma_f32 {D}, {D}, {st[4:6]}, {ab.sub(i,2)} op_sel_hi:[1,0,1] {NEG}")
        if post: post(b, acc)
        for i in range(8): b(f"v_cvt_pk_bf16_f32 {xf[i]}, {acc[2*i]}, {acc[2*i+1]}")
        out(b, xf)
        if after: after(b, acc)
        for nd in b.nodes:
            if hasattr(nd, 'want'): nd.tail = (1880 if ln is True else 1490 if ln else 1450 if not post else 1600) - nd.want
        est = self.sched(b)
        print('unit estimate', est, 'V' if vtype else 'K', ln, tr)
        V.free(acc, xf, *tmp)
        return est
    def top(self):
        self.a.need('dma'); self.a("s_barrier")
    def toggle(self):
        s, r = self.s, self.r
        self.a(f"v_xor_b32 {r['rd']}, {TILE}, {r['rd']}\ns_sub_u32 {s['m0b']}, {s['m0b']}, {s['w10']}\ns_xor_b32 {s['m0b']}, {s['m0b']}, {TILE}\ns_add_u32 {s['m0b']}, {s['m0b']}, {s['w10']}\ns_xor_b32 {s['xsb']}, {s['xsb']}, 8192")
    def reset_bufs(self, rd=None):
        s, r = self.s, self.r
        self.a(f"v_xor_b32 {r['rd']}, {TILE}, {rd or r['L16']}\ns_mov_b32 {s['m0b']}, {s['w10']}\ns_mov_b32 {s['xsb']}, {L_XS}")
    def kvpat(self, dst, big, tmp):
        L = self.r['L16']
        self.a(f"""v_and_b32 {dst}, 0x70, {L}
        v_lshrrev_b32 {tmp}, 8, {L}
        v_lshl_add_u32 {dst}, {tmp}, 7, {dst}
        v_bfe_u32 {tmp}, {L}, 7, 1
        v_lshl_add_u32 {dst}, {tmp}, {int(math.log2(big))}, {dst}""")

    def emit(self):
        a, s, r, g = self.a, self.s, self.r, self.g
        a(f"""s_sub_u32 {s['j']}, {g['role']}, 32
        v_and_b32 v0, 63, v0
        v_lshlrev_b32 {r['L16']}, 4, v0
        s_mov_b32 {s['ones']}, 0x3f803f80
        s_mul_i32 {s['w10']}, {s['w']}, 10240
        s_lshl_b32 {s['w1k']}, {s['w']}, 10
        s_mov_b32 {s['pa']}, {self.WS[2]}
        s_mov_b32 {s['pv']}, 0
        s_mov_b32 {s['lay']}, 0""")
        perm = self.cfg.get('perm', (0, 2, 1, 3, 4, 5, 6))
        if perm:
            code = sum(p << (4*i) for i, p in enumerate(perm))
            a(f"s_lshr_b32 {s['t0']}, {s['j']}, 5\ns_lshl_b32 {s['t0']}, {s['t0']}, 2\ns_lshr_b32 {s['t0']}, {code}, {s['t0']}\ns_and_b32 {s['t0']}, {s['t0']}, 7\ns_lshl_b32 {s['t0']}, {s['t0']}, 5\ns_and_b32 {s['j']}, {s['j']}, 31\ns_or_b32 {s['j']}, {s['j']}, {s['t0']}")
        if self.cfg.get('mix'):
            a(f"s_lshr_b32 {s['t0']}, {s['j']}, 5\ns_and_b32 {s['j']}, {s['j']}, 31\ns_mul_i32 {s['j']}, {s['j']}, 7\ns_add_u32 {s['j']}, {s['j']}, {s['t0']}")
        LV, LA = a.uid('roleV'), a.uid('roleA')
        self.mark(0)
        a(f"s_cmp_ge_u32 {s['j']}, 64\ns_cbranch_scc1 {LA}\ns_and_b32 {s['h']}, {s['j']}, 31\ns_cmp_ge_u32 {s['j']}, 32\ns_cbranch_scc1 {LV}")
        self.role_kv(False)
        a(f"{LV}:"); self.role_kv(True)
        a(f"{LA}:"); self.role_a()

    def role_kv(self, vtype):
        a, s, r, V, WS = self.a, self.s, self.r, self.V, self.WS; L = r['L16']
        cs = V(1) if vtype else V(16, 4); so = V(1); ma = V(1); rm = V(1); T = V(5, 4)
        mb, mdst, fl, msrc, mlds, xs0 = (self.S(1) for _ in range(6))
        R = V(40, 4); self.srd(s['srd'], K_WI if vtype else K_WR, 2048 * 642)
        a(f"""v_bfe_u32 {so}, {L}, 4, 2
        v_lshrrev_b32 {ma}, 6, {L}
        v_mul_u32_u24 {rm}, 642, {so}
        v_lshl_add_u32 {rm}, {ma}, 2, {rm}
        v_lshlrev_b32 {so}, 4, {so}
        v_lshl_add_u32 {so}, {ma}, 14, {so}
        s_and_b32 {s['t0']}, {s['h']}, 3
        s_bfe_u32 {s['t1']}, {s['h']}, 0x20002
        s_lshr_b32 {s['t2']}, {s['h']}, 4
        s_lshl_b32 {s['src']}, {s['t2']}, 2
        s_add_u32 {s['src']}, {s['src']}, {s['t0']}
        s_lshl_b32 {s['dst']}, {s['src']}, 8
        s_lshl_b32 {s['src']}, {s['src']}, 4
        s_add_u32 {s['src']}, {s['src']}, {s['t1']}
        s_lshl_b32 {s['src']}, {s['src']}, 2
        s_add_u32 {s['src']}, {s['src']}, {s['w']}
        s_mul_i32 {s['src']}, {s['src']}, {4*642}
        s_lshl_b32 {s['t1']}, {s['t1']}, 12
        s_add_u32 {s['dst']}, {s['dst']}, {s['t1']}
        s_lshl_b32 {s['t1']}, {s['w']}, 6
        s_add_u32 {s['dst']}, {s['dst']}, {s['t1']}
        s_add_u32 {s['dst']}, {s['dst']}, {FT_OFF + (2048 if vtype else 0)}""")
        for rr in range(4):
            a(f"s_add_u32 {s['t0']}, {s['src']}, {64*rr*642 + 2}")
            for c in range(10): a(f"buffer_load_dword {R[4*c + rr]}, {rm}, {s['srd']}, {s['t0']} offen offset:{64*c}")
        for c in range(10): a(f"buffer_store_dwordx4 {R.sub(4*c, 4)}, {so}, {WS}, {s['dst']} offen sc1\ns_add_u32 {s['dst']}, {s['dst']}, {16*16384}")
        a(f"s_lshl_b32 {s['t0']}, {s['j']}, 7\ns_add_u32 {s['t0']}, {s['t0']}, {F_FT}")
        self.pend(s['t0'], 1); self.flush(); V.free(R); self.mark(14)
        a(f"s_lshl_b32 {s['src']}, {s['h']}, 8\ns_lshl_b32 {s['t0']}, {s['w']}, 6\ns_add_u32 {s['src']}, {s['src']}, {s['t0']}")
        self.load_weights(K_WV if vtype else K_WK, 40, 8192, s['src'], vtype)
        self.srd(s['srd'], K_WO if vtype else K_WQ, 640 * 4096 * 2)
        if vtype: a(f"v_lshlrev_b32 {so}, 3, {L}\ns_mul_i32 {s['t0']}, {s['h']}, {128*1280}\ns_mul_i32 {s['t1']}, {s['w']}, 40960")
        else: a(f"v_lshrrev_b32 {so}, 5, {L}\nv_lshlrev_b32 {so}, 13, {so}\nv_bfe_u32 {ma}, {L}, 4, 1\nv_lshl_add_u32 {so}, {ma}, 7, {so}\ns_lshl_b32 {s['t0']}, {s['h']}, 8\ns_mul_i32 {s['t1']}, {s['w']}, {160*8192}")
        a(f"s_add_u32 {s['t0']}, {s['t0']}, {s['t1']}")
        for j in range(5): a(f"buffer_load_dword {T[j]}, {so}, {s['srd']}, {s['t0']} offen\ns_add_u32 {s['t0']}, {s['t0']}, {8192 if vtype else 32*8192}")
        self.colsum(self.W, cs, vtype)
        if vtype:
            a(f"v_and_b32 {so}, 0xf0, {L}\nv_bfe_u32 {T[0]}, {L}, 8, 1\nv_lshl_add_u32 {so}, {T[0]}, 10, {so}\nv_lshrrev_b32 {T[0]}, 9, {L}\nv_lshl_add_u32 {so}, {T[0]}, 8, {so}")
            a(f"s_lshl_b32 {s['sl']}, {s['w']}, 12\ns_add_u32 {s['sl']}, {s['sl']}, 2048")
        else:
            self.kvpat(so, 4096, T[0])
            a(f"s_lshr_b32 {s['sl']}, {s['w']}, 1\ns_lshl_b32 {s['sl']}, {s['sl']}, 13\ns_and_b32 {s['t0']}, {s['w']}, 1\ns_lshl_b32 {s['t0']}, {s['t0']}, 10\ns_add_u32 {s['sl']}, {s['sl']}, {s['t0']}")
        a(f"""s_lshl_b32 {s['t0']}, {s['h']}, 14
        s_add_u32 {s['sl']}, {s['sl']}, {s['t0']}
        v_bfe_u32 {ma}, {L}, 7, 2
        v_mul_u32_u24 {ma}, {ML_STEP}, {ma}
        v_bfe_u32 {T[0]}, {L}, 5, 2
        v_lshl_add_u32 {ma}, {T[0]}, 6, {ma}
        v_lshrrev_b32 {T[0]}, 9, {L}
        v_lshl_add_u32 {ma}, {T[0]}, 5, {ma}
        v_and_b32 {T[0]}, 16, {L}
        v_add_u32 {ma}, {T[0]}, {ma}
        s_lshl_b32 {fl}, {s['h']}, 8
        s_add_u32 {fl}, {fl}, {F_KV + (128 if vtype else 0)}
        s_mul_i32 {msrc}, {s['w']}, 2560
        s_add_u32 {msrc}, {msrc}, {ML_OFF}
        s_add_u32 {mdst}, {s['sl']}, {KVM_OFF}
        s_mov_b32 {mb}, 0""")
        def stores(dst):
            def f(b, pk):
                for fr in range(2): b(f"buffer_store_dwordx4 {pk.sub(4*fr,4)}, {so}, {WS}, {dst} offen offset:{fr*512} {self.cfg.get('kvst', 'sc1')}", tok='st')
            return f
        LAY, LX, LN, L1, L2, L3, LM, LT = (a.uid(x) for x in ('kvlay', 'kvx', 'kvn', 'kv', 'kv', 'kv', 'kvm', 'kvt'))
        nsrc, nv = mlds, rm
        nxt = lambda b: self.dma(b, nv, WS, nsrc, s['stp'], s['m0b'], inblock=True, stats=True)
        def next_x():
            a(f"s_cmp_lt_u32 {s['seg']}, 64\ns_cselect_b32 {nsrc}, {s['src']}, {WS[2]}\ns_cselect_b32 {s['xsrc']}, {xs0}, {WS[2]}\ns_mov_b32 {s['stp']}, 1024\nv_mov_b32 {nv}, {L}")
            a(f"s_add_u32 {s['src']}, {s['src']}, {TILE}\ns_add_u32 {xs0}, {xs0}, {XS_SEG}\ns_add_u32 {s['seg']}, {s['seg']}, 1")
        def next_m():
            a(f"s_lshl_b32 {s['t0']}, {mb}, 2\ns_add_u32 {s['t0']}, {s['t0']}, 4")
            self.poll(F_ML, 10, s['t0'], T, nap=self.cfg.get('mlnap', 2))
            a(f"s_mov_b32 {nsrc}, {msrc}\ns_mov_b32 {s['xsrc']}, {WS[2]}\ns_mov_b32 {s['stp']}, 256\nv_mov_b32 {nv}, {ma}\ns_add_u32 {msrc}, {msrc}, {4*ML_STEP}")
        self.mark(1)
        a(f"""{LAY}:
        s_mul_i32 {s['src']}, {s['lay']}, {2*BUF3}
        s_add_u32 {s['src']}, {s['src']}, {XT_OFF}
        s_add_u32 {s['src']}, {s['src']}, {s['w10']}
        s_mul_i32 {xs0}, {s['lay']}, {64*XS_SEG}
        s_add_u32 {xs0}, {xs0}, {XS_OFF}
        s_mul_i32 {s['dst']}, {s['lay']}, {KV_LAYER}
        s_add_u32 {s['dst']}, {s['dst']}, {KV_OFF}
        s_mul_i32 {s['t0']}, {s['h']}, {KV_HEAD - 16384}
        s_add_u32 {s['dst']}, {s['dst']}, {s['t0']}
        s_add_u32 {s['dst']}, {s['dst']}, {s['sl']}
        s_lshl_b32 {s['need']}, {s['lay']}, 1
        s_add_u32 {s['need']}, {s['need']}, 1
        s_mov_b32 {s['cnt']}, 0
        s_mov_b32 {s['seg']}, 0""")
        next_x(); self.reset_bufs()
        self.poll(F_P3, 10, s['need'], T)
        self.mark(2)
        self.dma(a, nv, WS, nsrc, s['stp'], s['m0b'], stats=True); a.need('dma')
        a(f"{LX}:")
        self.toggle()
        a(f"s_cmp_eq_u32 {s['cnt']}, 1\ns_cbranch_scc1 {L1}\ns_cmp_eq_u32 {s['cnt']}, 30\ns_cbranch_scc0 {L2}\ns_add_u32 {s['need']}, {s['need']}, 1\n{L1}:")
        self.flush()
        self.poll(F_P3, 160, s['need'], T)
        a(f"{L2}:\ns_add_u32 {s['cnt']}, {s['cnt']}, 1\ns_and_b32 {s['par']}, {s['cnt']}, 3\ns_cmp_lt_u32 {s['cnt']}, 12\ns_cselect_b32 {s['par']}, 1, {s['par']}\ns_cmp_eq_u32 {s['par']}, 0\ns_cbranch_scc1 {L3}")
        next_x(); a(f"{LN}:")
        self.top()
        self.unit(self.W, vtype, 'given', cs, stores(s['dst']), r['rd'], defer=True, nxt=nxt)
        a(f"s_lshl_b32 {s['t0']}, {s['lay']}, 6\ns_add_u32 {s['t0']}, {s['t0']}, {s['cnt']}\ns_add_u32 {s['dst']}, {s['dst']}, {KV_SEG}")
        self.pend(fl, s['t0'])
        if self.cfg.get('marks'):
            for i in (1, 2, 3, 11):
                lb = a.uid('mk'); a(f"s_cmp_lg_u32 {s['cnt']}, {i}\ns_cbranch_scc1 {lb}"); self.mark(3 + min(i, 4)); a(f"{lb}:")
        a(f"s_cmp_lg_u32 {s['par']}, 0\ns_cbranch_scc1 {LX}\n{LM}:")
        self.toggle(); next_x(); self.top(); self.mark(11)
        self.unit(self.W, vtype, False, None, stores(mdst), r['rd'], defer=True, nxt=nxt)
        a(f"s_add_u32 {mb}, {mb}, 1\ns_add_u32 {mdst}, {mdst}, {KVM_B}\ns_add_u32 {s['t0']}, {fl}, {F_KVM - F_KV}")
        self.pend(s['t0'], mb)
        a(f"s_cmp_lt_u32 {s['cnt']}, 64\ns_cbranch_scc1 {LX}\ns_and_b32 {s['t0']}, {mb}, 15\ns_cbranch_scc0 {LT}")
        self.flush(); next_m(); self.mark(10)
        self.dma(a, nv, WS, nsrc, s['stp'], s['m0b']); a.need('dma')
        a(f"s_branch {LM}\n{L3}:"); next_m(); a(f"s_branch {LN}\n{LT}:")
        self.flush(); self.mark(3)
        if vtype:
            LZ = a.uid('kvz'); keep = self.S(1); fcs, xso = V(1), V(1)
            a(f"""s_cmp_lg_u32 {s['lay']}, 0
            s_cbranch_scc1 {LZ}
            s_cmp_ge_u32 {s['h']}, 20
            s_cbranch_scc1 {LZ}
            s_mov_b32 {keep}, {s['sl']}
            s_mul_i32 {s['seg']}, {s['h']}, 13108
            s_lshr_b32 {s['seg']}, {s['seg']}, 16
            s_mul_i32 {s['t0']}, {s['seg']}, 5
            s_sub_u32 {s['sl']}, {s['h']}, {s['t0']}
            s_add_u32 {s['seg']}, {s['seg']}, 60
            s_add_u32 {xs0}, {s['h']}, 15
            s_lshl_b32 {s['t0']}, {s['sl']}, 2
            s_add_u32 {s['t0']}, {s['t0']}, {s['w']}
            s_lshl_b32 {s['par']}, {s['t0']}, 11
            v_lshrrev_b32 {T[0]}, 9, {L}
            v_and_b32 {xso}, 0x1ff, {L}
            v_lshlrev_b32 {xso}, 1, {xso}
            v_lshl_add_u32 {xso}, {T[0]}, 4, {xso}""")
            self.late_rows(T, xs0, fcs, xso, True)
            a(f"s_mov_b32 {s['sl']}, {keep}"); self.mark(9); a(f"{LZ}:")
            V.free(fcs, xso); self.S.free(keep)
        a(f"s_add_u32 {s['lay']}, {s['lay']}, 1\ns_cmp_lt_u32 {s['lay']}, 2\ns_cbranch_scc1 {LAY}\ns_endpgm")
        V.free(cs, so, ma, rm, T); self.S.free(mb, mdst, fl, msrc, mlds, xs0)

    def xf_out(self, so, dst):
        def f(b, pk):
            for fr in range(2): b(f"buffer_store_dwordx4 {pk.sub(4*fr,4)}, {so}, {self.WS}, {dst} offen offset:{fr*1024} sc1", tok='st')
        return f
    def role_a(self):
        a, s, r, V, WS = self.a, self.s, self.r, self.V, self.WS; L = r['L16']
        aa, sig = self.S(1), self.S(1); self.aa = aa
        rowpat = V(1); xso = V(1); fcs = V(1); self.rowpat = rowpat
        T = V(5, 4)
        a(f"""s_sub_u32 {aa}, {s['j']}, 64
        s_mul_i32 {sig}, {aa}, 13108
        s_lshr_b32 {sig}, {sig}, 16
        s_mul_i32 {s['t0']}, {sig}, 5
        s_sub_u32 {s['sl']}, {aa}, {s['t0']}
        v_bfe_u32 {rowpat}, {L}, 4, 5
        v_mul_u32_u24 {rowpat}, 1280, {rowpat}
        v_lshrrev_b32 {T[0]}, 9, {L}
        v_lshl_add_u32 {rowpat}, {T[0]}, 4, {rowpat}
        v_and_b32 {xso}, 0x1ff, {L}
        v_lshlrev_b32 {xso}, 1, {xso}
        v_lshl_add_u32 {xso}, {T[0]}, 4, {xso}""")
        self.srd(s['xsrd'], K_X, 2048 * 1280)
        F = V(160, 4); raw = V(4)
        x, y = T[0], T[1]
        a(f"""v_lshrrev_b32 {x}, 7, {L}
        v_lshl_add_u32 {x}, {s['w']}, 3, {x}
        v_bfe_u32 {y}, {x}, 1, 3
        v_lshlrev_b32 {y}, 4, {y}
        v_xor_b32 {y}, {y}, {L}
        v_and_b32 {y}, 0x70, {y}
        v_mul_u32_u24 {x}, 1280, {x}
        v_add_u32 {x}, {x}, {y}
        s_mul_i32 {s['src']}, {sig}, {TILE}
        s_lshl_b32 {s['m0b']}, {s['w']}, 10""")
        self.dma(a, x, s['xsrd'], s['src'], 128, s['m0b'], lstep=4096)
        a(f"s_add_u32 {s['src']}, {s['src']}, {32*TILE}\ns_add_u32 {s['m0b']}, {s['m0b']}, {TILE}")
        a(f"""
        v_bfe_u32 {raw[0]}, {L}, 5, 3
        v_lshrrev_b32 {y}, 9, {L}
        v_xor_b32 {raw[0]}, {raw[0]}, {y}
        v_lshlrev_b32 {raw[0]}, 4, {raw[0]}
        v_and_b32 {y}, 0x1f0, {L}
        v_lshl_add_u32 {raw[0]}, {y}, 3, {raw[0]}""")
        for i in range(1, 4): a(f"v_xor_b32 {raw[i]}, {32*i}, {raw[0]}")
        self.mark(14)
        def hook(f):
            if 2 <= f < 12:
                j = f - 2
                a(f"s_add_u32 m0, {s['m0b']}, {TO + j*4096}\ns_add_u32 {s['t3']}, {s['src']}, {j*128}")
                a(f"buffer_load_dwordx4 {x}, {s['xsrd']}, {s['t3']} offen lds", tok='dma')
        self.gen_dft(F, False, hook)
        self.colsum(F, fcs, True)
        self.mark(1)
        LP = a.uid('p1')
        a(f"""s_lshl_b32 {s['t0']}, {s['sl']}, 2
        s_add_u32 {s['t0']}, {s['t0']}, {s['w']}
        s_lshl_b32 {s['par']}, {s['t0']}, 11
        s_mul_i32 {s['dst']}, {sig}, {TILE}
        s_add_u32 {s['dst']}, {s['dst']}, {s['par']}
        s_add_u32 {s['dst']}, {s['dst']}, {XF_OFF}""")
        a(f"s_mov_b32 {s['cnt']}, 0"); a.need('dma'); a(f"{LP}:\ns_barrier")
        self.unit(F, True, True, fcs, self.xf_out(xso, s['dst']), None, raw=raw)
        for i in range(4): a(f"v_add_u32 {raw[i]}, {TILE}, {raw[i]}")
        a(f"s_add_u32 {s['dst']}, {s['dst']}, {32*TILE}\ns_add_u32 {s['cnt']}, {s['cnt']}, 1\ns_cmp_lt_u32 {s['cnt']}, 2\ns_cbranch_scc1 {LP}")
        a(f"s_lshl_b32 {s['t0']}, {aa}, 7\ns_add_u32 {s['t0']}, {s['t0']}, {F_P1A}")
        self.pend(s['t0'], 1)
        V.free(F, raw)
        LAY = a.uid('alay')
        a(f"{LAY}:")
        self.column_phase(T)
        self.inverse_rows(sig, T)
        LW, LB, LE = a.uid('wo'), a.uid('p1b'), a.uid('aend')
        a(f"s_cmp_ge_u32 {aa}, 144\ns_cbranch_scc1 {LB}\ns_cmp_ge_u32 {aa}, 64\ns_cbranch_scc1 {LW}")
        fi = self.S(1)
        self.role_qa(T); a(f"s_branch {LE}\n{LW}:")
        self.role_wo(T); a(f"s_branch {LE}\n{LB}:")
        a(f"s_cmp_eq_u32 {aa}, 144\ns_cbranch_scc1 {LE}\ns_cmp_lg_u32 {s['lay']}, 0\ns_cbranch_scc1 {LE}\ns_sub_u32 {s['seg']}, {sig}, 29\ns_sub_u32 {fi}, {aa}, 145")
        self.late_rows(T, fi, fcs, xso, False)
        a(f"{LE}:"); self.mark(9)
        a(f"s_add_u32 {s['lay']}, {s['lay']}, 1\ns_cmp_lt_u32 {s['lay']}, 2\ns_cbranch_scc1 {LAY}\ns_endpgm")

    def late_rows(self, T, fi, fcs, xso, sums):
        a, s, r, V, WS = self.a, self.s, self.r, self.V, self.WS; L = r['L16']
        F = V(160, 4); self.gen_dft(F, False)
        if sums: self.colsum(F, fcs, True)
        LQ = a.uid('p1q')
        a(f"""{LQ}:
        s_mul_i32 {s['t0']}, {s['seg']}, 21846
        s_lshr_b32 {s['t0']}, {s['t0']}, 16
        s_mul_i32 {s['t0']}, {s['t0']}, 3
        s_sub_u32 {s['t0']}, {s['seg']}, {s['t0']}
        s_and_b32 {s['t1']}, {s['seg']}, 3
        s_cmp_lt_u32 {s['seg']}, {56 if self.cfg.get('wo3', True) else 0}
        s_cselect_b32 {s['t0']}, {s['t0']}, {s['t1']}
        s_mul_i32 {s['t0']}, {s['t0']}, {20*128}
        s_add_u32 {s['t0']}, {s['t0']}, {F_X2}
        s_add_u32 {s['need']}, {s['seg']}, 1""")
        self.mark(10)
        self.poll(s['t0'], 20, s['need'], T)
        self.mark(11)
        a(f"""s_mul_i32 {s['t0']}, {s['seg']}, {TILE}
        s_add_u32 {s['src']}, {s['t0']}, {XT_OFF + BUF3}
        s_add_u32 {s['src']}, {s['src']}, {s['w10']}
        s_add_u32 {s['dst']}, {s['t0']}, {XF_OFF + BUF3}
        s_add_u32 {s['dst']}, {s['dst']}, {s['par']}""")
        self.dma(a, L, WS, s['src'], 1024, s['w10'])
        self.top(); self.mark(12)
        self.unit(F, True, True, fcs, self.xf_out(xso, s['dst']), L); self.mark(13)
        a(f"s_add_u32 {s['seg']}, {s['seg']}, 3\ns_cmp_lt_u32 {s['seg']}, 60\ns_cbranch_scc1 {LQ}")
        a(f"s_lshl_b32 {s['t0']}, {fi}, 7\ns_add_u32 {s['t0']}, {s['t0']}, {F_P1B}")
        self.pend(s['t0'], 1); self.flush()
        V.free(F)

    def column_phase(self, T):
        a, s, r, V, WS, aa = self.a, self.s, self.r, self.V, self.WS, self.aa; L = r['L16']
        C64, S64, N64, C32, S32, N32 = (V(8, 4) for _ in range(6))
        t1c, t1s, t2c, t2s = (V(8) for _ in range(4))
        X = V(64, 4); Y = V(32, 4); Z = V(16, 4); Fw = V(16, 4); ad = V(8); tmp = V(4)
        n, g4, u, x = X[0], X[1], X[2], X[3]; cv, sv = X.sub(8, 8), X.sub(16, 8)
        a(f"v_bfe_u32 {n}, {L}, 4, 4\nv_lshrrev_b32 {g4}, 8, {L}\nv_lshlrev_b32 {g4}, 2, {g4}")
        def sincos(c, sn, ureg, vreg, add, period, scale=None):
            a(f"v_add_u32 {x}, {add}, {vreg}\nv_mul_u32_u24 {x}, {x}, {ureg}\nv_and_b32 {x}, {period-1}, {x}\nv_cvt_f32_u32 {x}, {x}\nv_mul_f32 {x}, {f32(1/period)}, {x}\nv_cos_f32 {c}, {x}\nv_sin_f32 {sn}, {x}")
            if scale: a(f"v_mul_f32 {c}, {f32(scale)}, {c}\nv_mul_f32 {sn}, {f32(scale)}, {sn}")
        def pack(C, S_, N, j):
            for i in range(4):
                a(f"v_cvt_pk_bf16_f32 {C[4*j+i]}, {cv[2*i]}, {cv[2*i+1]}\nv_cvt_pk_bf16_f32 {S_[4*j+i]}, {sv[2*i]}, {sv[2*i+1]}\nv_xor_b32 {N[4*j+i]}, 0x80008000, {S_[4*j+i]}")
        a(f"v_lshl_add_u32 {u}, {s['w']}, 4, {n}")
        for ks in range(2):
            for el in range(8): sincos(cv[el], sv[el], u, g4, 32*ks + 16*(el >> 2) + (el & 3), 64)
            pack(C64, S64, N64, ks)
        self.flush(); self.mark(2)
        for el in range(8): sincos(t1c[el], t1s[el], u, g4, 16*(el >> 2) + (el & 3), 2048)
        k4 = X[4]; a(f"v_lshl_add_u32 {k4}, {s['w']}, 4, {g4}")
        for th in range(2):
            a(f"v_add_u32 {u}, {16*th}, {n}")
            for el in range(8): sincos(cv[el], sv[el], u, g4, 16*(el >> 2) + (el & 3), 32)
            pack(C32, S32, N32, th)
            for rr in range(4): sincos(t2c[4*th+rr], t2s[4*th+rr], u, k4, rr, 2048, 1/2048)
        a(f"""v_lshrrev_b32 {u}, 6, {L}
        v_and_b32 {x}, 7, {u}
        v_lshlrev_b32 {x}, 5, {x}
        v_lshl_add_u32 {u}, {u}, 8, {x}
        v_and_b32 {x}, 16, {L}
        v_add_u32 {u}, {u}, {x}
        v_bfe_u32 {x}, {L}, 5, 1
        v_lshl_add_u32 {ad[0]}, {x}, 3, {u}""")
        for p in range(1, 8): a(f"v_xor_b32 {ad[p]}, {32*p}, {ad[0]}")
        ga = [tmp[0], tmp[1]]
        a(f"v_lshrrev_b32 {u}, 8, {L}\nv_bfe_u32 {x}, {L}, 5, 3\nv_xor_b32 {x}, {x}, {u}\nv_mul_u32_u24 {u}, {TILE}, {u}\nv_and_b32 {n}, 16, {L}\nv_add_u32 {u}, {u}, {n}\nv_and_b32 {n}, 3, {x}\nv_lshl_add_u32 {u}, {n}, 5, {u}\nv_lshrrev_b32 {x}, 2, {x}")
        a(f"v_lshl_add_u32 {ga[0]}, {x}, 10, {u}\nv_xor_b32 {x}, 1, {x}\nv_lshl_add_u32 {ga[1]}, {x}, 10, {u}")
        a(f"s_lshl_b32 {s['t0']}, {s['w']}, 12\ns_add_u32 {s['t1']}, {s['t0']}, {L_FILT}\nv_add_u32 {Fw[12]}, {s['t1']}, {L}")
        a(f"""s_mov_b32 {s['m0b']}, {s['t0']}
        s_mul_i32 {s['src']}, {s['lay']}, {BUF3}
        s_mul_i32 {s['t1']}, {s['w']}, {16*TILE}
        s_add_u32 {s['src']}, {s['src']}, {s['t1']}
        s_lshl_b32 {s['t1']}, {aa}, 8
        s_add_u32 {s['dst']}, {s['src']}, {s['t1']}
        s_add_u32 {s['dst']}, {s['dst']}, {YT_OFF}
        s_lshr_b32 {s['t1']}, {aa}, 3
        s_lshl_b32 {s['t1']}, {s['t1']}, 11
        s_add_u32 {s['src']}, {s['src']}, {s['t1']}
        s_and_b32 {s['t1']}, {aa}, 7
        s_lshl_b32 {s['t1']}, {s['t1']}, 7
        s_add_u32 {s['src']}, {s['src']}, {s['t1']}
        s_add_u32 {s['src']}, {s['src']}, {XF_OFF}""")
        l1, l2 = a.uid('cw'), a.uid('cw')
        self.mark(3)
        a(f"s_cmp_lg_u32 {s['lay']}, 0\ns_cbranch_scc1 {l1}")
        self.poll(F_FT, 224, 1, T)
        a(f"s_add_u32 {s['t0']}, {s['m0b']}, {L_FILT - TO}\ns_lshl_b32 {s['t1']}, {aa}, 14\ns_add_u32 {s['t1']}, {s['t1']}, {s['m0b']}\ns_add_u32 {s['t1']}, {s['t1']}, {FT_OFF}")
        self.dma(a, L, WS, s['t1'], 1024, s['t0'], n=4)
        a(f"s_branch {l2}\n{l1}:")
        self.poll(F_P1B, 35, 1, T); a(f"{l2}:")
        self.mark(4)
        for j in range(4):
            a(f"s_add_u32 m0, {s['m0b']}, {j*1024}\ns_add_u32 {s['t2']}, {s['src']}, {4*j*TILE}")
            a(f"buffer_load_dwordx4 {ga[j & 1]}, {WS}, {s['t2']} offen sc1 lds", tok='dma')
        ex = tmp[2]; so = tmp[3]
        a(f"""s_lshr_b32 {s['t0']}, {s['w']}, 1
        s_lshl_b32 {s['t0']}, {s['t0']}, 10
        s_and_b32 {s['t1']}, {s['w']}, 1
        s_lshl_b32 {s['t1']}, {s['t1']}, 3
        s_add_u32 {s['t0']}, {s['t0']}, {s['t1']}
        v_add_u32 {ex}, {s['t0']}, {L}
        v_bfe_u32 {so}, {L}, 4, 4
        v_mul_u32_u24 {so}, {TILE}, {so}
        v_lshrrev_b32 {x}, 8, {L}
        v_lshl_add_u32 {so}, {x}, 4, {so}""")
        self.top()
        b = Block(); EX = 16384
        fr = lambda R, i: R.sub(4*i, 4)
        XI = lambda kc, th, ks: fr(X, 4*kc + 2*th + ks)
        YI = lambda kc, th: fr(Y, 2*kc + th)
        def cmul(kc0, cr, ci, conj, pre=None):
            for i in range(8):
                yr, yi = Y[8*kc0 + i], Y[8*kc0 + 8 + i]; t = tmp[i & 1]
                c, sn = (cr[i], ci[i]) if not pre else pre(i)
                b(f"v_mul_f32 {t}, {yr}, {sn}\nv_mul_f32 {yr}, {yr}, {c}")
                b(f"v_fma_f32 {yr}, {yi}, {'' if conj else '-'}{sn}, {yr}\nv_fma_f32 {yi}, {yi}, {c}, {'-' if conj else ''}{t}")
        def stage64(Sr, Si):
            for ph in range(2):
                for th in range(2):
                    for cp in range(2):
                        D = YI(2*ph + cp, th); k = 0
                        for ks in range(2):
                            for src, M in ((cp, C64), (1 - cp, Si if cp else Sr)):
                                b(f"{MF16} {D}, {XI(2*ph + src, th, ks)}, {fr(M, ks)}, {D if k else 0}"); k += 1
        def stage32(Sr, Si, dataA):
            for ph in range(2):
                for th in range(2):
                    for cp in range(2):
                        D = YI(2*ph + cp, th)
                        for k, (src, M) in enumerate(((cp, C32), (1 - cp, Si if cp else Sr))):
                            z, m = fr(Z, 2*ph + src), fr(M, th)
                            b(f"{MF16} {D}, {z if dataA else m}, {m if dataA else z}, {D if k else 0}")
        def packZ():
            for i in range(16): b(f"v_cvt_pk_bf16_f32 {Z[i]}, {Y[2*i]}, {Y[2*i+1]}")
        for j in range(4): b(f"ds_read_b128 {Fw.sub(4*j,4)}, {Fw[12]} offset:{j*1024}")
        for kc in range(4):
            for th in range(2):
                for ks in range(2):
                    for q in range(2): b(f"ds_read_b64_tr_b16 {XI(kc, th, ks).sub(2*q,2)}, {ad[4*th + kc]} offset:{(32*ks + 16*q)*256}")
        stage64(S64, N64)
        for ph in range(2): cmul(2*ph, t1c, t1s, True)
        packZ(); stage32(S32, N32, False)
        for ph in range(2):
            def unp(i, ph=ph):
                c, sn = X[16*ph + 2*i], X[16*ph + 2*i + 1]
                b(f"v_and_b32 {c}, 0xffff0000, {Fw[i]}\nv_and_b32 {sn}, 0xffff0000, {Fw[8+i]}" if ph else f"v_lshlrev_b32 {c}, 16, {Fw[i]}\nv_lshlrev_b32 {sn}, 16, {Fw[8+i]}")
                return c, sn
            cmul(2*ph, None, None, False, unp)
        packZ(); stage32(N32, S32, True)
        for ph in range(2): cmul(2*ph, t2c, t2s, False)
        packZ()
        for i in range(8): b(f"ds_write_b64 {ex}, {Z.sub(2*i,2)} offset:{EX + 2048*i}", tok='ex')
        b("s_barrier", done=['ex'], wr=['@e'])
        for i in range(16): b(f"ds_read_b128 {fr(X, i)}, {L} offset:{EX + 1024*i}", rd=['@e'])
        stage64(N64, S64)
        packZ()
        for kc in range(4): b(f"buffer_store_dwordx4 {fr(Z, kc)}, {so}, {WS}, {s['dst']} offen offset:{64*kc} sc1")
        print("column phase estimate", self.sched(b))
        V.free(C64, S64, N64, C32, S32, N32, t1c, t1s, t2c, t2s, X, Y, Z, Fw, ad, tmp)
        a(f"s_lshl_b32 {s['t0']}, {aa}, 7\ns_add_u32 {s['t0']}, {s['t0']}, {F_P2}\ns_add_u32 {s['need']}, {s['lay']}, 1")
        self.pend(s['t0'], s['need'])

    def inverse_rows(self, sig, T):
        a, s, r, V, WS, aa = self.a, self.s, self.r, self.V, self.WS, self.aa; L = r['L16']
        F = V(160, 4); res = V(8, 4); un = V(16, 2); ra = V(1); RS = s['srd']; r0, r1 = self.S(1), self.S(1)
        self.gen_dft(F, True, lambda f: (self.flush(), self.mark(5)) if f == self.cfg.get('gsplit', 12) else None)
        x = r['t0']; l1, l2 = a.uid('rs'), a.uid('rs')
        a(f"""v_and_b32 {r['rd']}, 0x2f0, {L}
        v_bfe_u32 {x}, {L}, 8, 1
        v_lshl_add_u32 {r['rd']}, {x}, 3, {r['rd']}
        s_mul_i32 {s['t0']}, {sig}, {TILE}
        s_mul_i32 {s['t1']}, {s['lay']}, {BUF3}
        s_add_u32 {s['src']}, {s['t0']}, {s['t1']}
        s_add_u32 {s['dst']}, {s['src']}, {s['t1']}
        s_add_u32 {s['dst']}, {s['dst']}, {s['par']}
        s_add_u32 {s['dst']}, {s['dst']}, {XT_OFF}
        s_add_u32 {s['src']}, {s['src']}, {s['w10']}
        s_add_u32 {s['src']}, {s['src']}, {YT_OFF}
        s_lshl_b32 {s['t1']}, {s['lay']}, 6
        s_add_u32 {s['t1']}, {s['t1']}, {sig}
        s_mul_i32 {s['t1']}, {s['t1']}, {XS_SEG}
        s_lshr_b32 {s['xsrc']}, {s['par']}, 3
        s_add_u32 {s['xsrc']}, {s['xsrc']}, {s['t1']}
        s_add_u32 {s['xsrc']}, {s['xsrc']}, {XS_OFF}
        s_mov_b32 {RS[3]}, 0x20000
        s_cmp_lg_u32 {s['lay']}, 0
        s_cbranch_scc1 {l1}
        s_mov_b64 {RS[0:2]}, {s['xsrd'][0:2]}
        s_mov_b32 {RS[2]}, {s['xsrd'][2]}
        s_lshr_b32 {r0}, {s['par']}, 5
        s_add_u32 {r0}, {r0}, {s['t0']}
        s_add_u32 {r1}, {r0}, 32
        v_mov_b32 {ra}, {self.rowpat}
        s_branch {l2}
        {l1}:
        s_mov_b64 {RS[0:2]}, {WS[0:2]}
        s_mov_b32 {RS[2]}, {WS[2]}
        s_sub_u32 {r0}, {s['dst']}, {BUF3}
        s_add_u32 {r1}, {r0}, 1024
        v_mov_b32 {ra}, {L}
        {l2}:""")
        self.mark(6)
        self.poll(F_P2, 160, s['need'], T)
        self.mark(7)
        self.dma(a, L, WS, s['src'], 1024, s['w10'])
        a(f"s_add_u32 {s['src']}, {s['src']}, {32*TILE}\ns_add_u32 {s['m0b']}, {s['w10']}, {TILE}\ns_mov_b32 {s['cnt']}, 0")
        LP = a.uid('p3'); a.need('dma'); a(f"{LP}:")
        self.top()
        def pre(b):
            for fr_, so in enumerate((r0, r1)): b(f"buffer_load_dwordx4 {res.sub(4*fr_,4)}, {ra}, {RS}, {so} offen sc1", lat=900)
        def post(b, acc):
            for i in range(16): b(f"v_and_b32 {un[i]}, 0xffff0000, {res[i>>1]}" if i & 1 else f"v_lshlrev_b32 {un[i]}, 16, {res[i>>1]}")
            b(f"v_mov_b32 {res[0]}, {f32(2/640)}")
            for i in range(0, 16, 2): b(f"v_pk_fma_f32 {acc.sub(i,2)}, {acc.sub(i,2)}, {res[0:2]}, {un.sub(i,2)} op_sel_hi:[1,0,1]")
        def after(b, acc):
            s1, s2 = res[2:4], res[4:6]
            b(f"v_pk_add_f32 {s1}, {acc[0:2]}, {acc[2:4]}\nv_pk_mul_f32 {s2}, {acc[0:2]}, {acc[0:2]}\nv_pk_fma_f32 {s2}, {acc[2:4]}, {acc[2:4]}, {s2}")
            for i in range(4, 16, 2): b(f"v_pk_add_f32 {s1}, {s1}, {acc.sub(i,2)}\nv_pk_fma_f32 {s2}, {acc.sub(i,2)}, {acc.sub(i,2)}, {s2}")
            b(f"v_add_f32 {s1[0]}, {s1[0]}, {s1[1]}\nv_add_f32 {s2[0]}, {s2[0]}, {s2[1]}")
            b(f"v_permlane32_swap_b32 {s1[0]}, {s2[0]}\nv_add_f32 {s1[0]}, {s1[0]}, {s2[0]}\nv_lshrrev_b32 {r['rs']}, 2, {L}")
            b(f"buffer_store_dword {s1[0]}, {r['rs']}, {WS}, {s['xsrc']} offen sc1")
        self.unit(F, False, False, None, self.xf_out(L, s['dst']), r['rd'], tr=True, pre=pre, post=post, after=after,
                  nxt=lambda b: self.dma(b, L, WS, s['src'], 1024, s['m0b'], inblock=True))
        a(f"""v_xor_b32 {r['rd']}, {TILE}, {r['rd']}
        s_mov_b32 {s['src']}, {WS[2]}
        s_mov_b32 {s['m0b']}, {s['w10']}
        s_add_u32 {s['dst']}, {s['dst']}, {32*TILE}
        s_add_u32 {s['xsrc']}, {s['xsrc']}, {32*XS_SEG}
        s_add_u32 {r0}, {r0}, {32*TILE}
        s_add_u32 {r1}, {r1}, {32*TILE}
        s_add_u32 {s['cnt']}, {s['cnt']}, 1
        s_lshl_b32 {s['t0']}, {aa}, 7
        s_add_u32 {s['t0']}, {s['t0']}, {F_P3}
        s_lshl_b32 {s['t1']}, {s['lay']}, 1
        s_add_u32 {s['t1']}, {s['t1']}, {s['cnt']}""")
        self.pend(s['t0'], s['t1']); self.flush()
        a(f"s_cmp_lt_u32 {s['cnt']}, 2\ns_cbranch_scc1 {LP}")
        self.mark(8)
        V.free(F, res, un, ra); self.S.free(r0, r1)

    def role_qa(self, T):
        a, s, r, V, WS, aa = self.a, self.s, self.r, self.V, self.WS, self.aa; L = r['L16']
        cs = V(16, 4); csa = self.W.sub(160, 16); qw = V(1); bt, fl, kvs = self.S(1), self.S(1), self.S(4, 1)
        l1 = a.uid('qw')
        a(f"s_and_b32 {s['h']}, {aa}, 31\ns_cmp_lg_u32 {s['lay']}, 0\ns_cbranch_scc1 {l1}")
        a(f"s_lshl_b32 {s['src']}, {s['h']}, 8\ns_lshl_b32 {s['t0']}, {s['w']}, 6\ns_add_u32 {s['src']}, {s['src']}, {s['t0']}")
        self.load_weights(K_WQ, 40, 8192, s['src'], False)
        self.colsum(self.W, cs, False)
        for i in range(16): a(f"v_accvgpr_write_b32 {csa[i]}, {cs[i]}")
        a(f"{l1}:")
        for i in range(16): a(f"v_accvgpr_read_b32 {cs[i]}, {csa[i]}")
        a(f"s_lshl_b32 {s['need']}, {s['lay']}, 1\ns_add_u32 {s['need']}, {s['need']}, 2\ns_lshr_b32 {bt}, {aa}, 5\ns_lshl_b32 {fl}, {s['h']}, 8\ns_add_u32 {fl}, {fl}, {F_KV}")
        self.poll(F_P3, 160, s['need'], T)
        LR, LU = a.uid('qr'), a.uid('qu')
        a(f"""{LR}:
        s_mul_i32 {s['src']}, {s['lay']}, {2*BUF3}
        s_mul_i32 {s['t0']}, {bt}, {4*TILE}
        s_add_u32 {s['src']}, {s['src']}, {s['t0']}
        s_add_u32 {s['src']}, {s['src']}, {s['w10']}
        s_add_u32 {s['src']}, {s['src']}, {XT_OFF}
        s_lshl_b32 {s['t0']}, {s['lay']}, 4
        s_add_u32 {s['t0']}, {s['t0']}, {bt}
        s_mul_i32 {s['t0']}, {s['t0']}, {4*XS_SEG}
        s_add_u32 {s['xsrc']}, {s['t0']}, {XS_OFF}
        s_lshl_b32 {s['t0']}, {s['w']}, 11
        s_add_u32 {s['t0']}, {s['t0']}, {TB2 + TO}
        v_add_u32 {qw}, {s['t0']}, {L}
        s_mov_b32 {s['cnt']}, 0""")
        self.mark(14)
        self.reset_bufs(); self.dma(a, L, WS, s['src'], 1024, s['m0b'], stats=True); a.need('dma')
        a(f"{LU}:"); self.toggle()
        a(f"s_add_u32 {s['src']}, {s['src']}, {TILE}\ns_add_u32 {s['xsrc']}, {s['xsrc']}, {XS_SEG}\ns_cmp_eq_u32 {s['cnt']}, 3\ns_cselect_b32 {s['src']}, {WS[2]}, {s['src']}\ns_cselect_b32 {s['xsrc']}, {WS[2]}, {s['xsrc']}")
        self.top()
        def qout(b, pk):
            for fr in range(2): b(f"ds_write_b128 {qw}, {pk.sub(4*fr,4)} offset:{fr*1024}", tok='qw')
        self.unit(self.W, False, 'given', cs, qout, r['rd'], scale=CSCALE, nxt=lambda b: self.dma(b, L, WS, s['src'], 1024, s['m0b'], inblock=True, stats=True))
        a(f"v_add_u32 {qw}, 8192, {qw}\ns_add_u32 {s['cnt']}, {s['cnt']}, 1\ns_cmp_lt_u32 {s['cnt']}, 4\ns_cbranch_scc1 {LU}")
        a.need('qw'); a("s_barrier"); self.mark(15)
        Q = V(32, 4); Kf = V(32, 4); Vf = V(32, 4); S_ = V(16, 4); Sm = V(16, 4); O = V(32, 4); vm = V(8, 2); ka, va, x = V(1), V(1), V(1)
        a(f"""s_lshl_b32 {s['seg']}, {bt}, 2
        s_add_u32 {s['seg']}, {s['seg']}, {s['w']}
        s_lshl_b32 {s['t0']}, {s['lay']}, 6
        s_add_u32 {s['need']}, {s['t0']}, {s['seg']}
        s_lshl_b32 {s['dst']}, {s['need']}, 18
        s_lshl_b32 {s['t1']}, {s['h']}, 13
        s_add_u32 {s['dst']}, {s['dst']}, {s['t1']}
        s_add_u32 {s['dst']}, {s['dst']}, {OT_OFF}
        s_mul_i32 {s['t0']}, {s['lay']}, {KV_LAYER}
        s_mul_i32 {s['t1']}, {s['seg']}, {KV_SEG}
        s_add_u32 {s['t0']}, {s['t0']}, {s['t1']}
        s_mul_i32 {s['t1']}, {s['h']}, {KV_HEAD}
        s_add_u32 {s['t0']}, {s['t0']}, {s['t1']}
        s_add_u32 {s['need']}, {s['need']}, 1
        s_mov_b32 {s['cnt']}, {s['need']}
        s_lshl_b32 {s['t1']}, {s['w']}, 13
        s_add_u32 {s['t1']}, {s['t1']}, {TB2 + TO}
        v_add_u32 {x}, {s['t1']}, {L}""")
        for i in range(4): a(f"s_add_u32 {kvs[i]}, {s['t0']}, {KV_OFF + 4096*i}")
        for f in range(8): a(f"ds_read_b128 {Q.sub(4*f,4)}, {x} offset:{f*1024}")
        self.kvpat(ka, 4096, x); self.kvpat(va, 1024, x)
        a(f"v_bfe_u32 {x}, {L}, 4, 5\nv_lshrrev_b32 {Sm[0]}, 9, {L}\nv_lshlrev_b32 {Sm[0]}, 2, {Sm[0]}\nv_sub_u32 {x}, {x}, {Sm[0]}\nv_mov_b32 {Sm[1]}, {f32(-1e30)}")
        for i in range(16): a(f"v_cmp_gt_i32 vcc, {8*(i>>2) + (i&3)}, {x}\nv_cndmask_b32 {S_[i]}, 0, {Sm[1]}, vcc")
        self.poll(fl, 2, s['need'], T, wg=False)
        def kload(ad):
            for f in range(8): a(f"buffer_load_dwordx4 {Kf.sub(4*f,4)}, {ad}, {WS}, {kvs[2*(f>>2)]} offen offset:{((f>>1)&1)*1024 + (f&1)*512} sc1")
        kload(ka)
        for f in range(8): a(f"buffer_load_dwordx4 {Vf.sub(4*f,4)}, {va}, {WS}, {kvs[f>>1]} offen offset:{2048 + (f&1)*512} sc1")
        for f in range(8): a(f"{MF32} {S_}, {Kf.sub(4*f,4)}, {Q.sub(4*f,4)}, {S_}")
        a(f"""s_lshl_b32 {s['t0']}, {s['lay']}, 4
        s_add_u32 {s['need']}, {s['t0']}, {bt}
        s_lshl_b32 {s['t0']}, {s['need']}, 19
        s_lshl_b32 {s['t1']}, {s['h']}, 14
        s_add_u32 {s['t0']}, {s['t0']}, {s['t1']}
        s_add_u32 {s['need']}, {s['need']}, 1
        s_and_b32 {s['t1']}, {s['w']}, 1
        s_lshr_b32 {s['t2']}, {s['w']}, 1
        v_and_b32 {ka}, 0x170, {ka}
        v_lshl_add_u32 {ka}, {s['t1']}, 12, {ka}
        v_lshl_add_u32 {ka}, {s['t2']}, 7, {ka}
        v_lshl_add_u32 {va}, {s['t1']}, 3, {va}
        v_lshl_add_u32 {va}, {s['t2']}, 9, {va}""")
        for i in range(4): a(f"s_add_u32 {kvs[i]}, {s['t0']}, {KVM_OFF + 4096*i}")
        mx, sm, t = Sm[4], Sm[5], Sm[6]; xm = x
        a(f"v_max3_f32 {xm}, {S_[0]}, {S_[1]}, {S_[2]}")
        for i in range(3, 15, 2): a(f"v_max3_f32 {xm}, {xm}, {S_[i]}, {S_[i+1]}")
        a(f"v_max_f32 {xm}, {xm}, {S_[15]}")
        self.mark(10)
        a(f"s_add_u32 {s['t0']}, {fl}, {F_KVM - F_KV}")
        self.poll(s['t0'], 2, s['need'], T, wg=False)
        self.mark(11)
        kload(ka)
        for e in range(4): a(f"buffer_load_dwordx2 {vm.sub(2*e,2)}, {va}, {WS}, {kvs[e]} offen offset:2048 sc1")
        for f in range(8): a(f"{MF32} {Sm}, {Kf.sub(4*f,4)}, {Q.sub(4*f,4)}, {Sm if f else 0}")
        self.mark(12)
        b = Block()
        vals = [S_[i] for i in range(16)] + [Sm[i] for i in range(4)]
        b(f"v_max3_f32 {mx}, {xm}, {Sm[0]}, {Sm[1]}\nv_max3_f32 {mx}, {mx}, {Sm[2]}, {Sm[3]}\nv_mov_b32 {t}, {mx}\nv_permlane32_swap_b32 {mx}, {t}\nv_max_f32 {mx}, {mx}, {t}")
        for v in vals: b(f"v_sub_f32 {v}, {v}, {mx}\nv_exp_f32 {v}, {v}")
        Pk = Q.sub(0, 10)
        for i in range(10): b(f"v_cvt_pk_bf16_f32 {Pk[i]}, {vals[2*i]}, {vals[2*i+1]}")
        b(f"v_add_f32 {sm}, {vals[0]}, {vals[1]}")
        for v in vals[2:]: b(f"v_add_f32 {sm}, {sm}, {v}")
        b(f"v_mov_b32 {t}, {sm}\nv_permlane32_swap_b32 {sm}, {t}\nv_add_f32 {sm}, {sm}, {t}\nv_rcp_f32 {sm}, {sm}")
        b(f"s_add_u32 {s['t1']}, {s['dst']}, 4096")
        Os = [O[0:16], O[16:32], Kf[0:16], Kf[16:32]]
        for e in range(4):
            D = Os[e]
            b(f"v_mfma_f32_32x32x8_bf16 {D}, {vm.sub(2*e,2)}, {Pk[8:10]}, 0")
            for fr in range(2): b(f"{MF32} {D}, {Vf.sub(8*e + 4*fr,4)}, {Pk.sub(4*fr,4)}, {D}")
            for i in range(16): b(f"v_mul_f32 {D[i]}, {D[i]}, {sm}")
            for i in range(8): b(f"v_cvt_pk_bf16_f32 {D[i]}, {D[2*i]}, {D[2*i+1]}")
            for fr in range(2): b(f"buffer_store_dwordx4 {D.sub(4*fr,4)}, {L}, {WS}, {s['dst'] if e < 2 else s['t1']} offen offset:{(e&1)*2048 + fr*1024} sc1")
        print("attention tail estimate", self.sched(b))
        self.mark(13)
        a(f"s_and_b32 {s['t0']}, {s['seg']}, 7\ns_lshl_b32 {s['t0']}, {s['t0']}, 5\ns_add_u32 {s['t0']}, {s['t0']}, {s['h']}\ns_lshl_b32 {s['t0']}, {s['t0']}, 7\ns_add_u32 {s['t0']}, {s['t0']}, {F_O}\ns_waitcnt vmcnt(0)")
        self.flag(s['t0'], s['cnt'])
        a(f"s_add_u32 {bt}, {bt}, 2\ns_cmp_lt_u32 {bt}, 16\ns_cbranch_scc1 {LR}\ns_barrier")
        V.free(cs, qw, Q, Kf, Vf, S_, Sm, O, vm, ka, va, x); self.S.free(bt, fl, kvs)

    def role_wo(self, T):
        a, s, r, V, WS, aa = self.a, self.s, self.r, self.V, self.WS, self.aa; L = r['L16']
        NB = 44; B = V(4 * NB, 4); acc = V(16, 4); res = V(4, 4); wa, ra = V(1), V(1); c, OUT = self.S(1), self.S(4)
        l1 = a.uid('ww')
        a(f"""s_sub_u32 {s['t0']}, {aa}, 64
        s_mul_i32 {s['seg']}, {s['t0']}, 3277
        s_lshr_b32 {s['seg']}, {s['seg']}, 16
        s_mul_i32 {s['t1']}, {s['seg']}, 20
        s_sub_u32 {c}, {s['t0']}, {s['t1']}
        s_cmp_lg_u32 {s['lay']}, 0
        s_cbranch_scc1 {l1}
        s_mul_i32 {s['src']}, {s['w']}, {1024*1280}
        s_lshl_b32 {s['t0']}, {c}, 6
        s_add_u32 {s['src']}, {s['src']}, {s['t0']}""")
        self.load_weights(K_WO, 64, 1280, s['src'], False)
        a(f"{l1}:")
        self.srd(OUT, K_OUT, 2048 * 1280)
        a(f"s_lshl_b32 {s['t0']}, {s['w']}, 12\nv_add_u32 {wa}, {s['t0']}, {L}\ns_lshl_b32 {s['t0']}, {s['w']}, 11\nv_add_u32 {ra}, {s['t0']}, {L}")
        ph = self.S(1); wo3 = self.cfg.get('wo3', True)
        if wo3: a(f"s_add_u32 {ph}, {s['seg']}, 56\ns_cmp_eq_u32 {s['seg']}, 3\ns_cselect_b32 {s['seg']}, {ph}, {s['seg']}")
        LS, LN, LO, LF = (a.uid(x) for x in ('ws', 'wn', 'wo', 'wf'))
        a(f"""{LS}:
        s_lshl_b32 {s['t0']}, {s['lay']}, 6
        s_add_u32 {s['t0']}, {s['t0']}, {s['seg']}
        s_lshl_b32 {s['src']}, {s['t0']}, 18
        s_lshl_b32 {s['t1']}, {s['w']}, 16
        s_add_u32 {s['src']}, {s['src']}, {s['t1']}
        s_add_u32 {s['src']}, {s['src']}, {OT_OFF}
        s_add_u32 {s['stp']}, {s['t0']}, 1
        s_and_b32 {s['t0']}, {s['t0']}, 7
        s_lshl_b32 {s['t0']}, {s['t0']}, 12
        s_add_u32 {s['t0']}, {s['t0']}, {s['w1k']}
        s_add_u32 {s['cnt']}, {s['t0']}, {F_O}
        s_mul_i32 {s['dst']}, {s['seg']}, {TILE}
        s_and_b32 {s['t0']}, {s['w']}, 1
        s_lshl_b32 {s['t1']}, {c}, 1
        s_add_u32 {s['need']}, {s['t0']}, {s['t1']}""")
        self.mark(10)
        self.poll(s['cnt'], 8, s['stp'], T, wg=False)
        self.mark(11)
        a(f"""s_lshl_b32 {s['t0']}, {s['need']}, 10
        s_add_u32 {s['t0']}, {s['t0']}, {s['dst']}
        s_mul_i32 {s['t1']}, {s['lay']}, {2*BUF3}
        s_add_u32 {s['t0']}, {s['t0']}, {s['t1']}
        s_add_u32 {s['t0']}, {s['t0']}, {XT_OFF}""")
        def ld(f):
            if f % 4 == 0: a(f"s_add_u32 {s['t1']}, {s['src']}, {f*1024}")
            a(f"buffer_load_dwordx4 {B.sub(4*(f % NB),4)}, {L}, {WS}, {s['t1']} offen offset:{(f % 4)*1024} sc1")
        for f in range(NB): ld(f)
        for f in range(64):
            a(f"{MF32} {acc}, {self.W.sub(4*f,4)}, {B.sub(4*(f % NB),4)}, {acc if f else 0}")
            if f + NB < 64: ld(f + NB)
            if f + NB == 64: a(f"buffer_load_dwordx4 {res}, {L}, {WS}, {s['t0']} offen sc1")
        self.mark(12)
        for j in range(4): a(f"ds_write_b128 {wa}, {acc.sub(4*j,4)} offset:{j*1024}", tok='pw')
        a.need('pw'); a(f"s_barrier\ns_cmp_ge_u32 {s['w']}, 2\ns_cbranch_scc1 {LN}")
        for p in range(4):
            for j in range(2): a(f"ds_read_b128 {B.sub(8*p + 4*j,4)}, {ra} offset:{p*4096 + j*1024}")
        for i in range(8):
            a(f"v_and_b32 {acc[i]}, 0xffff0000, {res[i>>1]}" if i & 1 else f"v_lshlrev_b32 {acc[i]}, 16, {res[i>>1]}")
        for i in range(8): a(f"v_add_f32 {B[i]}, {B[i]}, {B[8+i]}\nv_add_f32 {B[16+i]}, {B[16+i]}, {B[24+i]}")
        for i in range(8): a(f"v_add_f32 {B[i]}, {B[i]}, {B[16+i]}")
        for i in range(8): a(f"v_add_f32 {B[i]}, {B[i]}, {acc[i]}")
        for i in range(4): a(f"v_cvt_pk_bf16_f32 {res[i]}, {B[2*i]}, {B[2*i+1]}")
        a(f"""s_cmp_lg_u32 {s['lay']}, 0
        s_cbranch_scc1 {LO}
        s_add_u32 {s['t0']}, {s['t0']}, {BUF3}
        buffer_store_dwordx4 {res}, {L}, {WS}, {s['t0']} offen sc1
        s_branch {LN}
        {LO}:
        s_lshl_b32 {s['t0']}, {s['need']}, 5
        s_add_u32 {s['t0']}, {s['t0']}, {s['dst']}
        buffer_store_dwordx4 {res}, {self.rowpat}, {OUT}, {s['t0']} offen {self.cfg.get('outf', '')}
        {LN}:
        s_lshl_b32 {s['t0']}, {aa}, 7
        s_add_u32 {s['t0']}, {s['t0']}, {F_X2 - 64*128}""")
        self.pend(s['t0'], s['stp']); self.flush()
        if wo3: a(f"s_add_u32 {s['t0']}, {s['seg']}, 3\ns_cmp_lt_u32 {s['t0']}, 56\ns_cselect_b32 {s['t0']}, {s['t0']}, {ph}\ns_add_u32 {s['t1']}, {s['seg']}, 4\ns_cmp_lt_u32 {s['seg']}, 56\ns_cselect_b32 {s['seg']}, {s['t0']}, {s['t1']}")
        else: a(f"s_add_u32 {s['seg']}, {s['seg']}, 4")
        a(f"s_cmp_lt_u32 {s['seg']}, 64\ns_cbranch_scc1 {LS}")
        V.free(B, acc, res, wa, ra); self.S.free(c, OUT, ph)
```

```python
import sys
from asmlib import *
from layout import *
from chain import Chain, GROUPS, GMAP
from workers import Workers
NAME = "interleave_layers__spectral_gfnet__memory_aug_recurrent_mem_tr__prompt"
KN = NAME + "_kernel"

def allin(a, DBG, lane, x, y, z, spin, fail, clear, chain=None):
    l1, l2 = a.uid('all'), a.uid('all')
    a(f"v_and_b32 {x}, 15, {lane}")
    if not chain: a(f"v_cmp_ne_u32 vcc, 9, {x}\nv_cndmask_b32 {x}, 10, {x}, vcc")
    a(f"v_lshlrev_b32 {x}, 4, {x}")
    if chain: a(f"buffer_load_dword {y}, {x}, {DBG}, 0 offen sc1"); chain(); a(f"s_mov_b32 {spin}, 0\ns_branch {l2}")
    else: a(f"s_mov_b32 {spin}, 0")
    a(f"""{l1}:
    buffer_load_dword {y}, {x}, {DBG}, 0 offen sc1
    s_add_u32 {spin}, {spin}, 1
    s_cmp_gt_u32 {spin}, {SPIN_MAX}
    s_cbranch_scc1 {fail}
    {l2}:
    v_add_u32_dpp {z}, {y}, {y} quad_perm:[1,0,3,2] row_mask:0xf bank_mask:0xf
    v_add_u32_dpp {z}, {z}, {z} quad_perm:[2,3,0,1] row_mask:0xf bank_mask:0xf
    v_add_u32_dpp {z}, {z}, {z} row_ror:4 row_mask:0xf bank_mask:0xf
    v_add_u32_dpp {z}, {z}, {z} row_ror:8 row_mask:0xf bank_mask:0xf
    v_cmp_ne_u32 vcc, {256 + (NCLEAR if clear else 0) + (32 if chain else 0)}, {z}
    s_cbranch_vccnz {l1}""")

def prologue(a, S, s):
    WS, DBG = s['WS'], s['DBG']
    t = [S(1) for _ in range(4)]; cnt = S(8, 4)
    l1, l2, l3, l4 = a.uid('reg'), a.uid('reg'), a.uid('reg'), a.uid('reg')
    a(f"""
    s_cmp_ge_u32 s2, 256
    s_cbranch_scc1 L_end
    s_load_dwordx2 {WS[0:2]}, s[0:1], {K_WS}
    s_load_dwordx2 {DBG[0:2]}, s[0:1], {K_DBG}
    s_mov_b32 {WS[2]}, {WS_SIZE}
    s_mov_b32 {WS[3]}, 0x20000
    s_mov_b32 {DBG[2]}, 256
    s_mov_b32 {DBG[3]}, 0x20000
    s_getreg_b32 {s['xcc']}, hwreg(HW_REG_XCC_ID, 0, 3)
    v_lshrrev_b32 v1, 6, v0
    v_readfirstlane_b32 {s['w']}, v1
    s_waitcnt lgkmcnt(0)
    s_cmp_lg_u32 {s['w']}, 0
    s_cbranch_scc1 {l3}
    """)
    die = s['die']; slot = lambda x: ((x - die - 1) & 7) + 1; l5, l6, l7 = a.uid('reg'), a.uid('reg'), a.uid('reg')
    a(f"""
    v_mov_b32 v1, 0
    v_mov_b32 v2, -1
    ds_write_b32 v1, v2
    s_sub_u32 {t[0]}, {s['xcc']}, {die + 1}
    s_and_b32 {t[0]}, {t[0]}, 7
    s_lshl_b32 {t[0]}, {t[0]}, 4
    v_mov_b32 v2, 1
    s_mov_b64 exec, 1
    buffer_atomic_add v2, off, {DBG}, {t[0]} offset:16 sc0
    s_mov_b64 exec, -1
    ; the first 32 workgroups on the preferred die know their role as soon as there are 32 of them
    s_cmp_lg_u32 {s['xcc']}, {die}
    s_cbranch_scc1 {l6}
    v_readfirstlane_b32 {t[1]}, v2
    s_cmp_ge_u32 {t[1]}, 32
    s_cbranch_scc1 {l6}
    s_mov_b32 {t[3]}, 0
    {l5}:
    buffer_load_dword v3, off, {DBG}, 0 offset:128 sc1
    v_cmp_gt_u32 vcc, 32, v3
    s_cbranch_vccz {l7}
    s_add_u32 {t[3]}, {t[3]}, 1
    s_cmp_lt_u32 {t[3]}, 16
    s_cbranch_scc1 {l5}
    {l6}:
    """)
    allin(a, DBG, 'v0', 'v1', 'v3', 'v4', t[1], 'L_fail', s['clear'])
    a(f"""
    v_readfirstlane_b32 {t[2]}, v2
    """)
    for i in range(8): a(f"v_readlane_b32 {cnt[i]}, v3, {slot(i)}")
    pref = [s['die']] + [i for i in range(8) if i != s['die']]
    a(f"s_mov_b32 {t[0]}, {pref[7]}")
    for i in reversed(pref[:7]): a(f"s_cmp_ge_u32 {cnt[i]}, 32\ns_cselect_b32 {t[0]}, {i}, {t[0]}")
    a(f"s_mov_b32 {t[1]}, {t[2]}")
    for i in range(7): a(f"s_cmp_gt_u32 {s['xcc']}, {i}\ns_cselect_b32 {t[3]}, {cnt[i]}, 0\ns_add_u32 {t[1]}, {t[1]}, {t[3]}")
    a(f"""
    s_add_u32 {t[3]}, {t[1]}, 32
    s_cmp_lt_u32 {s['xcc']}, {t[0]}
    s_cselect_b32 {t[1]}, {t[3]}, {t[1]}
    s_cmp_eq_u32 {s['xcc']}, {t[0]}
    s_cselect_b32 {t[3]}, {t[2]}, 32
    s_cmp_lt_u32 {t[3]}, 32
    s_cselect_b32 {t[1]}, {t[3]}, {t[1]}
    {l7}:
    v_mov_b32 v1, 0
    v_mov_b32 v2, {t[1]}
    ds_write_b32 v1, v2
    s_waitcnt lgkmcnt(0)
    s_branch {l2}
    {l3}:""")
    if s['icache']:
        l8 = a.uid('reg')
        a(f"""
        s_cmp_lg_u32 {s['w']}, 3
        s_cbranch_scc1 {l8}
        s_getpc_b64 {cnt[0:2]}
        L_here:
        s_bfe_u32 {t[0]}, s2, 0x50003
        v_and_b32 v1, 63, v0
        v_lshl_add_u32 v1, v1, 5, {t[0]}
        v_lshlrev_b32 v1, 7, v1
        v_min_u32 v1, L_last-L_here, v1
        v_mov_b32 v7, {cnt[1]}
        v_add_co_u32 v6, vcc, {cnt[0]}, v1
        v_addc_co_u32 v7, vcc, 0, v7, vcc
        global_load_dword v6, v[6:7], off
        {l8}:""")
    if s['clear']:
        a(f"""
        s_cmp_lg_u32 {s['w']}, 1
        s_cbranch_scc1 {l4}
        s_cmp_ge_u32 s2, {NCLEAR}
        s_cbranch_scc1 {l4}
        v_lshlrev_b32 v1, 7, v0
        s_lshl_b32 {t[0]}, s2, 13
        s_add_u32 {t[0]}, {t[0]}, {FLAGS - 8192}
        v_mov_b32 v4, 0
        buffer_store_dword v4, v1, {WS}, {t[0]} offen sc1
        v_mov_b32 v2, 1
        s_waitcnt vmcnt(0)
        s_mov_b64 exec, 1
        buffer_atomic_add v2, off, {DBG}, 0
        s_mov_b64 exec, -1
        {l4}:""")
    a(f"""
    s_cmp_eq_u32 {s['xcc']}, {die}
    s_cbranch_scc1 {l2}
    s_load_dwordx2 {cnt[4:6]}, s[0:1], {K_WK}
    s_mov_b32 {cnt[6]}, {640*4096*2}
    s_mov_b32 {cnt[7]}, 0x20000
    s_lshl_b32 {t[0]}, {s['w']}, 3
    s_sub_u32 {t[0]}, {t[0]}, 8
    s_load_dwordx2 {cnt[0:2]}, s[0:1], {t[0]}
    s_mov_b32 {t[1]}, {2048*642}
    s_cmp_eq_u32 {s['w']}, 1
    s_cselect_b32 {cnt[2]}, {2048*1280}, {t[1]}
    s_cselect_b32 {t[1]}, 80, 41
    s_mov_b32 {cnt[3]}, 0x20000
    s_mul_i32 {t[2]}, {t[1]}, s2
    s_lshl_b32 {t[2]}, {t[2]}, 7
    s_sub_u32 {t[1]}, {t[1]}, 1
    v_and_b32 v1, 63, v0
    v_add_u32 v2, 64, v1
    v_min_u32 v1, {t[1]}, v1
    v_min_u32 v2, {t[1]}, v2
    v_lshlrev_b32 v1, 7, v1
    v_lshlrev_b32 v2, 7, v2
    buffer_load_dword v3, v1, {cnt[0:4]}, {t[2]} offen
    buffer_load_dword v4, v2, {cnt[0:4]}, {t[2]} offen
    v_subrev_u32 v1, 64, v0
    v_min_u32 v1, 159, v1
    v_lshlrev_b32 v1, 7, v1
    s_mul_i32 {t[2]}, s2, {160*128}
    buffer_load_dword v5, v1, {cnt[4:8]}, {t[2]} offen
    {l2}:
    s_barrier
    v_mov_b32 v1, 0
    ds_read_b32 v2, v1
    v_readfirstlane_b32 {s['role']}, v2
    s_barrier
    s_cmp_ge_u32 {s['role']}, 256
    s_cbranch_scc1 L_end
    """)
    S.free(*t, cnt)

def chains(a, S, s, cfg, groups, fail, verbose=False):
    import copy
    gmap = cfg.get('gmap') or (GMAP if groups is GROUPS else [h % len(groups) for h in range(32)])
    for gi, gc in enumerate(groups):
        nxt = a.uid('grp'); mask = sum(1 << h for h in range(32) if gmap[h] == gi)
        if gi + 1 < len(groups): a(f"s_bitcmp1_b32 {hex(mask)}, {s['role']}\ns_cbranch_scc0 {nxt}")
        c = dict(cfg); c.update(gc)
        ch = Chain(a, copy.deepcopy(S), c)
        ch.S.free(ch.s['h'], ch.s['w'], s['xcc']); ch.s['h'] = s['role']; ch.s['w'] = s['w']
        assert any(g.get('publish') and gmap.count(i) >= 10 for i, g in enumerate(groups)) or len(groups) == 1
        a(f"s_bfm_b32 {ch.s['pub']}, {s['role']}, 0\ns_and_b32 {ch.s['pub']}, {ch.s['pub']}, {hex(mask)}\ns_bcnt1_i32_b32 {ch.s['pub']}, {ch.s['pub']}")
        if 'clear' in s: ch.allin = lambda rest, *x: allin(a, s['DBG'], *x, fail, s['clear'], rest)
        ch.setup(s['WS'], s['DBG'], fail)
        ch.body(verbose)
        a(f"{nxt}:")

_head = {}
def build(cfg=None, clear=True, verbose=False):
    a = Asm(); S = Pool('s', 4, 102)
    s = dict(WS=S(4), DBG=S(4), xcc=S(1), w=S(1), role=S(1), clear=clear, die=(cfg or {}).get('die', 7), icache=(cfg or {}).get('icache', True))
    a(f"{KN}:")
    if cfg and cfg.get('stamps'): a("s_memrealtime s[4:5]\ns_waitcnt lgkmcnt(0)\ns_mov_b32 s3, s4")
    prologue(a, S, s)
    import copy
    cfg = cfg or {}
    FAIL = f"""L_fail:
    s_mov_b64 exec, 1
    v_mov_b32 v1, 0xdead
    buffer_store_dword v1, off, {s['DBG']}, 0 offset:{D_ERR*4} sc1
    L_end:
    s_endpgm"""
    key = (clear, bool(cfg.get('stamps')), repr(sorted((k, v) for k, v in cfg.items() if k in ('marks', 'mid', 'gsplit', 'wtries', 'kvst', 'dsh', 'nap', 'mlnap', 'perm', 'mix', 'die', 'wo3', 'icache', 'outf'))))
    if key not in _head:
        a(f"s_cmp_lt_u32 {s['role']}, 32\ns_cbranch_scc1 L_chain")
        if clear: Workers(a, copy.deepcopy(S), s, cfg).emit()
        else: a("s_endpgm")
        a(FAIL); a("L_chain:\ns_endpgm")
        _head[key] = a.finish([KN]).rsplit("L_chain:", 1)[0]
    a = Asm(); a._uid = 10000
    a("L_chain:\ns_waitcnt vmcnt(0)\ns_nop 4")
    groups = cfg.get('groups') or ([{}] if 'own' in cfg else GROUPS)
    chains(a, S, s, cfg, groups, 'L_fail', verbose)
    a("L_last:\ns_endpgm\nL_fail:\ns_endpgm")
    body = _head[key] + a.finish(['L_chain']).rsplit("L_fail:", 1)[0]
    head = open('/code/' + NAME + '.s.ref').read().split('; Override launch')[0] if False else ''
    return f"""; @launch grid=(256,1,1) block=(256,1,1) lds=163840
.amdgcn_target "amdgcn-amd-amdhsa--gfx950"
.text
.globl {KN}
.p2align 8
.type {KN},@function
{body}
.section .rodata,"a"
.p2align 6
.amdhsa_kernel {KN}
  .amdhsa_next_free_vgpr 512
  .amdhsa_next_free_sgpr 102
  .amdhsa_accum_offset 256
  .amdhsa_group_segment_fixed_size 0
  .amdhsa_kernarg_size 104
  .amdhsa_user_sgpr_count 2
  .amdhsa_user_sgpr_kernarg_segment_ptr 1
  .amdhsa_system_sgpr_workgroup_id_x 1
  .amdhsa_float_denorm_mode_32 3
  .amdhsa_ieee_mode 0
.end_amdhsa_kernel
"""
if __name__ == "__main__":
    full = '-f' in sys.argv
    t = build(eval(sys.argv[1]) if len(sys.argv) > 1 else {}, clear=full, verbose='-v' in sys.argv)
    open('/code/' + NAME + '.s' if full else 'chain_test.s', 'w').write(t)
```

```python
import sys
from asmlib import *
from layout import *
from chain import Chain, GROUPS, GMAP
from workers import Workers
NAME = "interleave_layers__spectral_gfnet__memory_aug_recurrent_mem_tr__prompt"
KN = NAME + "_kernel"

def allin(a, DBG, lane, x, y, z, spin, fail, clear, chain=None):
    l1, l2 = a.uid('all'), a.uid('all')
    a(f"v_and_b32 {x}, 15, {lane}")
    if not chain: a(f"v_cmp_ne_u32 vcc, 9, {x}\nv_cndmask_b32 {x}, 10, {x}, vcc")
    a(f"v_lshlrev_b32 {x}, 4, {x}")
    if chain: a(f"buffer_load_dword {y}, {x}, {DBG}, 0 offen sc1"); chain(); a(f"s_mov_b32 {spin}, 0\ns_branch {l2}")
    else: a(f"s_mov_b32 {spin}, 0")
    a(f"""{l1}:
    buffer_load_dword {y}, {x}, {DBG}, 0 offen sc1
    s_add_u32 {spin}, {spin}, 1
    s_cmp_gt_u32 {spin}, {SPIN_MAX}
    s_cbranch_scc1 {fail}
    {l2}:
    v_add_u32_dpp {z}, {y}, {y} quad_perm:[1,0,3,2] row_mask:0xf bank_mask:0xf
    v_add_u32_dpp {z}, {z}, {z} quad_perm:[2,3,0,1] row_mask:0xf bank_mask:0xf
    v_add_u32_dpp {z}, {z}, {z} row_ror:4 row_mask:0xf bank_mask:0xf
    v_add_u32_dpp {z}, {z}, {z} row_ror:8 row_mask:0xf bank_mask:0xf
    v_cmp_ne_u32 vcc, {256 + (NCLEAR if clear else 0) + (32 if chain else 0)}, {z}
    s_cbranch_vccnz {l1}""")

def prologue(a, S, s):
    WS, DBG = s['WS'], s['DBG']
    t = [S(1) for _ in range(4)]; cnt = S(8, 4)
    l1, l2, l3, l4 = a.uid('reg'), a.uid('reg'), a.uid('reg'), a.uid('reg')
    a(f"""
    s_cmp_ge_u32 s2, 256
    s_cbranch_scc1 L_end
    s_load_dwordx2 {WS[0:2]}, s[0:1], {K_WS}
    s_load_dwordx2 {DBG[0:2]}, s[0:1], {K_DBG}
    s_mov_b32 {WS[2]}, {WS_SIZE}
    s_mov_b32 {WS[3]}, 0x20000
    s_mov_b32 {DBG[2]}, 256
    s_mov_b32 {DBG[3]}, 0x20000
    s_getreg_b32 {s['xcc']}, hwreg(HW_REG_XCC_ID, 0, 3)
    {s['fake']}
    v_lshrrev_b32 v1, 6, v0
    v_readfirstlane_b32 {s['w']}, v1
    s_waitcnt lgkmcnt(0)
    s_cmp_lg_u32 {s['w']}, 0
    s_cbranch_scc1 {l3}
    """)
    die = s['die']; slot = lambda x: ((x - die - 1) & 7) + 1; l5, l6, l7 = a.uid('reg'), a.uid('reg'), a.uid('reg')
    a(f"""
    v_mov_b32 v1, 0
    v_mov_b32 v2, -1
    ds_write_b32 v1, v2
    s_sub_u32 {t[0]}, {s['xcc']}, {die + 1}
    s_and_b32 {t[0]}, {t[0]}, 7
    s_lshl_b32 {t[0]}, {t[0]}, 4
    v_mov_b32 v2, 1
    s_mov_b64 exec, 1
    buffer_atomic_add v2, off, {DBG}, {t[0]} offset:16 sc0
    s_mov_b64 exec, -1
    ; the first 32 workgroups on the preferred die know their role as soon as there are 32 of them
    s_cmp_lg_u32 {s['xcc']}, {die}
    s_cbranch_scc1 {l6}
    v_readfirstlane_b32 {t[1]}, v2
    s_cmp_ge_u32 {t[1]}, 32
    s_cbranch_scc1 {l6}
    s_mov_b32 {t[3]}, 0
    {l5}:
    buffer_load_dword v3, off, {DBG}, 0 offset:128 sc1
    v_cmp_gt_u32 vcc, 32, v3
    s_cbranch_vccz {l7}
    s_add_u32 {t[3]}, {t[3]}, 1
    s_cmp_lt_u32 {t[3]}, 16
    s_cbranch_scc1 {l5}
    {l6}:
    """)
    allin(a, DBG, 'v0', 'v1', 'v3', 'v4', t[1], 'L_fail', s['clear'])
    a(f"""
    v_readfirstlane_b32 {t[2]}, v2
    """)
    for i in range(8): a(f"v_readlane_b32 {cnt[i]}, v3, {slot(i)}")
    pref = [s['die']] + [i for i in range(8) if i != s['die']]
    a(f"s_mov_b32 {t[0]}, {pref[7]}")
    for i in reversed(pref[:7]): a(f"s_cmp_ge_u32 {cnt[i]}, 32\ns_cselect_b32 {t[0]}, {i}, {t[0]}")
    a(f"s_mov_b32 {t[1]}, {t[2]}")
    for i in range(7): a(f"s_cmp_gt_u32 {s['xcc']}, {i}\ns_cselect_b32 {t[3]}, {cnt[i]}, 0\ns_add_u32 {t[1]}, {t[1]}, {t[3]}")
    a(f"""
    s_add_u32 {t[3]}, {t[1]}, 32
    s_cmp_lt_u32 {s['xcc']}, {t[0]}
    s_cselect_b32 {t[1]}, {t[3]}, {t[1]}
    s_cmp_eq_u32 {s['xcc']}, {t[0]}
    s_cselect_b32 {t[3]}, {t[2]}, 32
    s_cmp_lt_u32 {t[3]}, 32
    s_cselect_b32 {t[1]}, {t[3]}, {t[1]}
    {l7}:
    v_mov_b32 v1, 0
    v_mov_b32 v2, {t[1]}
    ds_write_b32 v1, v2
    s_waitcnt lgkmcnt(0)
    s_branch {l2}
    {l3}:""")
    if s['icache']:
        l8 = a.uid('reg')
        a(f"""
        s_cmp_lg_u32 {s['w']}, 3
        s_cbranch_scc1 {l8}
        s_getpc_b64 {cnt[0:2]}
        L_here:
        s_bfe_u32 {t[0]}, s2, 0x50003
        v_and_b32 v1, 63, v0
        v_lshl_add_u32 v1, v1, 5, {t[0]}
        v_lshlrev_b32 v1, 7, v1
        v_min_u32 v1, L_last-L_here, v1
        v_mov_b32 v7, {cnt[1]}
        v_add_co_u32 v6, vcc, {cnt[0]}, v1
        v_addc_co_u32 v7, vcc, 0, v7, vcc
        global_load_dword v6, v[6:7], off
        {l8}:""")
    if s['clear']:
        a(f"""
        s_cmp_lg_u32 {s['w']}, 1
        s_cbranch_scc1 {l4}
        s_cmp_ge_u32 s2, {NCLEAR}
        s_cbranch_scc1 {l4}
        v_lshlrev_b32 v1, 7, v0
        s_lshl_b32 {t[0]}, s2, 13
        s_add_u32 {t[0]}, {t[0]}, {FLAGS - 8192}
        v_mov_b32 v4, 0
        buffer_store_dword v4, v1, {WS}, {t[0]} offen sc1
        v_mov_b32 v2, 1
        s_waitcnt vmcnt(0)
        s_mov_b64 exec, 1
        buffer_atomic_add v2, off, {DBG}, 0
        s_mov_b64 exec, -1
        {l4}:""")
    a(f"""
    s_cmp_eq_u32 {s['xcc']}, {die}
    s_cbranch_scc1 {l2}
    s_load_dwordx2 {cnt[4:6]}, s[0:1], {K_WK}
    s_mov_b32 {cnt[6]}, {640*4096*2}
    s_mov_b32 {cnt[7]}, 0x20000
    s_lshl_b32 {t[0]}, {s['w']}, 3
    s_sub_u32 {t[0]}, {t[0]}, 8
    s_load_dwordx2 {cnt[0:2]}, s[0:1], {t[0]}
    s_mov_b32 {t[1]}, {2048*642}
    s_cmp_eq_u32 {s['w']}, 1
    s_cselect_b32 {cnt[2]}, {2048*1280}, {t[1]}
    s_cselect_b32 {t[1]}, 80, 41
    s_mov_b32 {cnt[3]}, 0x20000
    s_mul_i32 {t[2]}, {t[1]}, s2
    s_lshl_b32 {t[2]}, {t[2]}, 7
    s_sub_u32 {t[1]}, {t[1]}, 1
    v_and_b32 v1, 63, v0
    v_add_u32 v2, 64, v1
    v_min_u32 v1, {t[1]}, v1
    v_min_u32 v2, {t[1]}, v2
    v_lshlrev_b32 v1, 7, v1
    v_lshlrev_b32 v2, 7, v2
    buffer_load_dword v3, v1, {cnt[0:4]}, {t[2]} offen
    buffer_load_dword v4, v2, {cnt[0:4]}, {t[2]} offen
    v_subrev_u32 v1, 64, v0
    v_min_u32 v1, 159, v1
    v_lshlrev_b32 v1, 7, v1
    s_mul_i32 {t[2]}, s2, {160*128}
    buffer_load_dword v5, v1, {cnt[4:8]}, {t[2]} offen
    {l2}:
    s_barrier
    v_mov_b32 v1, 0
    ds_read_b32 v2, v1
    v_readfirstlane_b32 {s['role']}, v2
    s_barrier
    s_cmp_ge_u32 {s['role']}, 256
    s_cbranch_scc1 L_end
    """)
    S.free(*t, cnt)

def chains(a, S, s, cfg, groups, fail, verbose=False):
    import copy
    gmap = cfg.get('gmap') or (GMAP if groups is GROUPS else [h % len(groups) for h in range(32)])
    for gi, gc in enumerate(groups):
        nxt = a.uid('grp'); mask = sum(1 << h for h in range(32) if gmap[h] == gi)
        if gi + 1 < len(groups): a(f"s_bitcmp1_b32 {hex(mask)}, {s['role']}\ns_cbranch_scc0 {nxt}")
        c = dict(cfg); c.update(gc)
        ch = Chain(a, copy.deepcopy(S), c)
        ch.S.free(ch.s['h'], ch.s['w'], s['xcc']); ch.s['h'] = s['role']; ch.s['w'] = s['w']
        assert any(g.get('publish') and gmap.count(i) >= 10 for i, g in enumerate(groups)) or len(groups) == 1
        a(f"s_bfm_b32 {ch.s['pub']}, {s['role']}, 0\ns_and_b32 {ch.s['pub']}, {ch.s['pub']}, {hex(mask)}\ns_bcnt1_i32_b32 {ch.s['pub']}, {ch.s['pub']}")
        if 'clear' in s: ch.allin = lambda rest, *x: allin(a, s['DBG'], *x, fail, s['clear'], rest)
        ch.setup(s['WS'], s['DBG'], fail)
        ch.body(verbose)
        a(f"{nxt}:")

HEADER = """; Generated by gen/gen.py (own generator: chain.py, workers.py; waits and hazard pads by asmlib.py, ordering by sched.py).
; One persistent launch, one workgroup per CU.  Roles are drawn at run time from per-die tickets (HW_REG_XCC_ID, counters in
; d_debug): 32 workgroups that really share one die run the memory recurrence, one head each, all 63 steps per layer in order;
; Hand-offs between dies: sc1 stores, vmcnt(0), barrier, flag word (zeroed at the start of this launch), sc1 loads.
; Hand-offs inside the recurrence die: 8-byte units carrying a step-parity bit, re-read until every bit matches; the short
; Layer norm is applied in the GEMM epilogues (rstd * (x W - mean * colsum W)); the zero-frequency column of a normalised row
"""
_head = {}
def build(cfg=None, clear=True, verbose=False):
    a = Asm(); S = Pool('s', 4, 102)
    s = dict(WS=S(4), DBG=S(4), xcc=S(1), w=S(1), role=S(1), clear=clear, die=(cfg or {}).get('die', 7), icache=(cfg or {}).get('icache', True))
    x = s['xcc']; s['fake'] = f"s_add_u32 s20, {x}, 1\ns_and_b32 s20, s20, 6\ns_lshr_b32 s21, s2, 4\ns_or_b32 s20, s20, s21\ns_cselect_b32 {x}, {x}, 6" if (cfg or {}).get('fake') else ''
    a(f"{KN}:")
    if cfg and cfg.get('stamps'): a("s_memrealtime s[4:5]\ns_waitcnt lgkmcnt(0)\ns_mov_b32 s3, s4")
    prologue(a, S, s)
    import copy
    cfg = cfg or {}
    FAIL = f"""L_fail:
    s_mov_b64 exec, 1
    v_mov_b32 v1, 0xdead
    buffer_store_dword v1, off, {s['DBG']}, 0 offset:{D_ERR*4} sc1
    L_end:
    s_endpgm"""
    key = (clear, bool(cfg.get('stamps')), repr(sorted((k, v) for k, v in cfg.items() if k in ('marks', 'mid', 'gsplit', 'wtries', 'kvst', 'dsh', 'nap', 'mlnap', 'perm', 'mix', 'die', 'wo3', 'icache', 'outf', 'fake'))))
    if key not in _head:
        a(f"s_cmp_lt_u32 {s['role']}, 32\ns_cbranch_scc1 L_chain")
        if clear: Workers(a, copy.deepcopy(S), s, cfg).emit()
        else: a("s_endpgm")
        a(FAIL); a("L_chain:\ns_endpgm")
        _head[key] = a.finish([KN]).rsplit("L_chain:", 1)[0]
    a = Asm(); a._uid = 10000
    a("L_chain:\ns_waitcnt vmcnt(0)\ns_nop 4")
    groups = cfg.get('groups') or ([{}] if 'own' in cfg else GROUPS)
    chains(a, S, s, cfg, groups, 'L_fail', verbose)
    a("L_last:\ns_endpgm\nL_fail:\ns_endpgm")
    body = _head[key] + a.finish(['L_chain']).rsplit("L_fail:", 1)[0]
    head = open('/code/' + NAME + '.s.ref').read().split('; Override launch')[0] if False else ''
    return f"""; @launch grid=(256,1,1) block=(256,1,1) lds=163840
{HEADER}.amdgcn_target "amdgcn-amd-amdhsa--gfx950"
.text
.globl {KN}
.p2align 8
.type {KN},@function
{body}
.section .rodata,"a"
.p2align 6
.amdhsa_kernel {KN}
  .amdhsa_next_free_vgpr 512
  .amdhsa_next_free_sgpr 102
  .amdhsa_accum_offset 256
  .amdhsa_group_segment_fixed_size 0
  .amdhsa_kernarg_size 104
  .amdhsa_user_sgpr_count 2
  .amdhsa_user_sgpr_kernarg_segment_ptr 1
  .amdhsa_system_sgpr_workgroup_id_x 1
  .amdhsa_float_denorm_mode_32 3
  .amdhsa_ieee_mode 0
.end_amdhsa_kernel
"""
if __name__ == "__main__":
    full = '-f' in sys.argv
    t = build(eval(sys.argv[1]) if len(sys.argv) > 1 else {}, clear=full, verbose='-v' in sys.argv)
    open('/code/' + NAME + '.s' if full else 'chain_test.s', 'w').write(t)
```
